```python
import torch

def _softmax(x, axis=-1):
    return torch.softmax(x, dim=axis)
def _gelu(x):
    return torch.nn.functional.gelu(x, approximate="tanh")
def _silu(x):
    return torch.nn.functional.silu(x)
def _sigmoid(x):
    return torch.sigmoid(x)
def _layernorm(x, axis=-1, eps=1e-5):
    m = x.mean(dim=axis, keepdim=True)
    v = x.var(dim=axis, keepdim=True, unbiased=False)
    return (x - m) / torch.sqrt(v + eps)
def _scatter_add(tgt, idx, src, axis=0):
    return tgt.clone().index_add_(axis, idx, src)
def _segment_sum(src, seg, n):
    out = torch.zeros((n,) + src.shape[1:], dtype=src.dtype)
    return out.index_add_(0, seg, src)
def _pad(x, pw):
    flat = tuple(v for pair in reversed(pw) for v in pair)
    return torch.nn.functional.pad(x, flat)

kernel_name = 'parallel_sum__ssm_conv_s4d__mixer_channel_mlp__prompt'

def setup_inputs():

    _w = (lambda a: (lambda t: t.to(torch.bfloat16) if t.is_floating_point() else t)(torch.as_tensor(a)))
    def _A_setup():
        Bsz, L, D, N = 1, 2048, 640, 192
        return {
            "u": _w((lambda *s: torch.randn(*s, dtype=torch.bfloat16) * 0.05)(Bsz, L, D)),
            "log_A_real": _w((lambda *s: torch.randn(*s, dtype=torch.bfloat16) * 3.2)(D, N) * 0.5),
            "A_imag": _w((lambda *s: torch.randn(*s, dtype=torch.bfloat16) * 0.05)(D, N) * 3.14),
            "C_real": _w((lambda *s: torch.randn(*s, dtype=torch.bfloat16) * 0.1)(D, N) / N ** 0.5),
            "C_imag": _w((lambda *s: torch.randn(*s, dtype=torch.bfloat16) * 0.2)(D, N) / N ** 0.5),
            "log_dt": _w((lambda *s: torch.randn(*s, dtype=torch.bfloat16) * 0.05)(D) * 0.5 - 4.0),
            "D_skip": _w((lambda *s: torch.randn(*s, dtype=torch.bfloat16) * 0.05)(D)),
        }
    _A_in = _A_setup()

    def _B_setup():
        B, S, D, F = 1, 2048, 640, 1536
        return {
            "x": _w((lambda *s: torch.randn(*s, dtype=torch.bfloat16) * 0.05)(B, S, D)),
            "w1": _w((lambda *s: torch.randn(*s, dtype=torch.bfloat16) * 1.6)(D, F) * (D ** -0.5)),
            "b1": _w((lambda *s: torch.randn(*s, dtype=torch.bfloat16) * 0.8)(F)),
            "w2": _w((lambda *s: torch.randn(*s, dtype=torch.bfloat16) * 0.05)(F, D) * (F ** -0.5)),
            "b2": _w((lambda *s: torch.randn(*s, dtype=torch.bfloat16) * 0.05)(D)),
        }
    _B_in = _B_setup()

    return {
        "A_u": _A_in["u"],
        "A_log_A_real": _A_in["log_A_real"],
        "A_A_imag": _A_in["A_imag"],
        "A_C_real": _A_in["C_real"],
        "A_C_imag": _A_in["C_imag"],
        "A_log_dt": _A_in["log_dt"],
        "A_D_skip": _A_in["D_skip"],
        "B_x": _B_in["x"],
        "B_w1": _B_in["w1"],
        "B_b1": _B_in["b1"],
        "B_w2": _B_in["w2"],
        "B_b2": _B_in["b2"],
    }

def reference(A_u, A_log_A_real, A_A_imag, A_C_real, A_C_imag, A_log_dt, A_D_skip, B_x, B_w1, B_b1, B_w2, B_b2):
    def _A_ref(u, log_A_real, A_imag, C_real, C_imag, log_dt, D_skip):
        L = u.shape[1]
        dt = torch.exp(log_dt)
        A = -torch.exp(log_A_real) + 1j * A_imag
        C = (C_real + 1j * C_imag) * dt[:, None]
        pos = (lambda x, dt: x.to(dt))(torch.arange(L), log_dt.dtype)
        P = torch.exp((A * dt[:, None])[:, :, None] * pos[None, None, :])
        K = 2.0 * torch.einsum("dn,dnl->dl", C, P).real
        L2 = 2 * L
        u_t = (lambda x, *d: x.permute(*d))(u, 0, 2, 1)
        Kf = (lambda x, *a, **k: torch.fft.rfft(x.float(), *a, **k))(K, L2)
        Uf = (lambda x, *a, **k: torch.fft.rfft(x.float(), *a, **k))(u_t, L2)
        y = (lambda x, *a, **k: torch.fft.irfft(x, *a, **k).to(torch.bfloat16))(Uf * Kf[None, :, :], L2)[:, :, :L]
        y = (lambda x, *d: x.permute(*d))(y, 0, 2, 1)
        return y + u * D_skip[None, None, :]

    def _B_ref(x, w1, b1, w2, b2):
        y = _layernorm(x, axis=-1)
        h = _gelu(torch.einsum("bsd,df->bsf", y, w1) + b1)
        return torch.einsum("bsf,fd->bsd", h, w2) + b2

    x = A_u
    xn = _layernorm(x, axis=-1)
    return x + _A_ref(xn, A_log_A_real, A_A_imag, A_C_real, A_C_imag, A_log_dt, A_D_skip) + _B_ref(xn, B_w1, B_b1, B_w2, B_b2)
```

```python
import re

TRANS = ('v_exp_f32', 'v_log_f32', 'v_rcp_f32', 'v_rsq_f32', 'v_sqrt_f32', 'v_sin_f32', 'v_cos_f32')
_reg_re = re.compile(r'^(-|\|)?(abs\()?([vsa])(\d+|\[(\d+):(\d+)\])')


def regs_of(opnd):
    o = opnd.strip()
    if o in ('vcc', 'vcc_lo', 'vcc_hi'):
        return {('s', 'vcc')}
    if o == 'm0':
        return {('s', 'm0')}
    if o in ('exec', 'exec_lo', 'exec_hi'):
        return {('s', 'exec')}
    m = _reg_re.match(o)
    if not m:
        return set()
    k = m.group(3)
    if m.group(5) is not None:
        return {(k, i) for i in range(int(m.group(5)), int(m.group(6)) + 1)}
    return {(k, int(m.group(4)))}


def split_ops(rest):
    out, depth, cur = [], 0, ''
    for ch in rest:
        if ch in '[(':
            depth += 1
        if ch in '])':
            depth -= 1
        if ch == ',' and depth == 0:
            out.append(cur.strip()); cur = ''
        else:
            cur += ch
    if cur.strip():
        out.append(cur.strip())
    if out:
        parts = out[-1].split()
        out[-1] = parts[0]
        mods = parts[1:]
    else:
        mods = []
    return out, mods


class I:
    __slots__ = ('text', 'op', 'kind', 'dst', 'src', 'ops', 'mods', 'passes', 'A', 'B', 'C', 'wide', 'data')

    def __init__(self, text):
        self.text = text
        t = text.split(';')[0].strip()
        self.dst, self.src = set(), set()
        self.passes = 0
        self.wide = False
        self.data = set()
        if t.endswith(':') or t.startswith('.') or not t:
            self.op, self.kind, self.ops, self.mods = t, 'label', [], []
            return
        sp = t.split(None, 1)
        op = sp[0]
        ops, mods = split_ops(sp[1]) if len(sp) > 1 else ([], [])
        self.op, self.ops, self.mods = op, ops, mods
        R = [regs_of(o) for o in ops]
        U = lambda l: set().union(*l) if l else set()
        if op.startswith('v_mfma'):
            self.kind = 'mfma'
            self.passes = 8 if '32x32' in op else 4
            self.dst = R[0]; self.A, self.B, self.C = R[1], R[2], R[3]
            self.src = R[1] | R[2] | R[3]
        elif op.startswith('v_'):
            self.kind = 'valu'
            if op.startswith('v_pk_') and op.endswith('f32'):
                m = re.search(r'op_sel:\[([01,]+)\]', t)
                if m:
                    sel = [int(x) for x, o in zip(m.group(1).split(','), ops[1:]) if o.startswith('v')]
                    assert sel[:2] != [0, 1], 'unsafe op_sel: ' + text
            if op.startswith('v_permlane'):
                self.dst = R[0] | R[1]; self.src = R[0] | R[1]
            elif op.startswith('v_nop'):
                pass
            else:
                self.dst = R[0]; self.src = U(R[1:])
                if op.startswith(('v_fmac', 'v_dot2c', 'v_writelane')):
                    self.src |= R[0]
                if op.startswith('v_cndmask') and len(ops) == 3:
                    self.src |= {('s', 'vcc')}
                if op.startswith(('v_add_co', 'v_sub_co', 'v_addc_co')):
                    self.dst |= R[1]
                if '_dpp' in op:
                    self.src |= R[0]
        elif op.startswith('ds_'):
            self.kind = 'ds'
            if op.startswith(('ds_read', 'ds_bpermute', 'ds_permute', 'ds_swizzle')) or '_rtn' in op:
                self.dst = R[0]; self.src = U(R[1:])
            else:
                self.src = U(R)
        elif op.startswith(('buffer_', 'global_')):
            self.kind = 'vmem'
            if 'lds' in mods:
                self.src = U(R) | {('s', 'm0')}
            elif '_load' in op:
                self.dst = R[0]; self.src = U(R[1:])
            elif op in ('buffer_wbl2', 'buffer_inv'):
                pass
            else:
                self.src = U(R)
                if 'x4' in op or 'x3' in op:
                    self.wide = True
                    self.data = R[0] if op.startswith('buffer_') else R[1]
                if 'atomic' in op and 'sc0' in mods:
                    self.dst = R[0]
        elif op.startswith(('s_load', 's_buffer_load', 's_memtime', 's_memrealtime')):
            self.kind = 'smem'
            self.dst = R[0]; self.src = U(R[1:])
        elif op.startswith('s_'):
            self.kind = 'salu'
            if op.startswith(('s_cmp', 's_bitcmp')):
                self.src = U(R)
            elif op in ('s_waitcnt', 's_nop', 's_barrier', 's_setprio', 's_sleep', 's_endpgm', 's_branch') or op.startswith('s_cbranch'):
                self.kind = 'ctl'
                if 'vcc' in op:
                    self.src = {('s', 'vcc')}
            else:
                self.dst = R[0]; self.src = U(R[1:])
                if op.startswith(('s_addk', 's_mulk')):
                    self.src |= R[0]
                if 'saveexec' in op:
                    self.dst |= {('s', 'exec')}
        else:
            raise ValueError('unknown op ' + text)


def need_states(p, c):
    n = 0
    pv = {r for r in p.dst if r[0] in 'va'}
    ps = {r for r in p.dst if r[0] == 's'}
    if p.kind == 'valu':
        isdot = p.op.startswith('v_dot')
        if c.kind == 'mfma' and pv & c.src:
            n = max(n, 3 if isdot else 2)
        if c.kind == 'valu':
            if isdot and pv & (c.src | c.dst):
                same = c.op == p.op
                if same:
                    ab = set().union(*[regs_of(o) for o in (c.ops[1:3])])
                    if pv & ab:
                        n = max(n, 3)
                else:
                    n = max(n, 3)
            if p.op.startswith(TRANS) and pv & c.src:
                n = max(n, 1)
            if (c.op.startswith('v_permlane') or '_dpp' in c.op) and pv & c.src:
                n = max(n, 2)
            if c.op.startswith(('v_readlane', 'v_readfirstlane')) and pv & c.src:
                n = max(n, 1)
            if ps & c.src:
                n = max(n, 4 if c.op.startswith(('v_readlane', 'v_writelane')) else 2)
        if c.kind in ('ds', 'vmem') and isdot and pv & c.src:
            n = max(n, 3)
        if c.kind in ('ds', 'vmem') and p.op.startswith(TRANS) and pv & c.src:
            n = max(n, 1)
        if c.kind == 'vmem' and ps & c.src:
            n = max(n, 5)
        if c.kind in ('salu', 'smem', 'ctl') and ps & c.src:
            n = max(n, 2)
    elif p.kind == 'mfma':
        big = 12 if p.passes == 8 else 8
        if c.kind == 'mfma':
            if p.dst & (c.A | c.B):
                n = max(n, big)
            if p.dst & c.C:
                if not (p.dst == c.C and p.passes == c.passes):
                    n = max(n, big - 2)
            elif p.dst & c.dst:
                n = max(n, big - 2)
        elif c.kind in ('valu', 'ds', 'vmem'):
            if p.dst & (c.src | c.dst):
                n = max(n, big)
            if c.kind == 'valu' and p.C & c.dst:
                n = max(n, p.passes - 1)
    elif p.kind == 'salu':
        if ('s', 'm0') in p.dst and ('s', 'm0') in c.src and c.kind in ('vmem', 'ds'):
            n = max(n, 1)
    elif p.kind == 'vmem':
        if p.wide and p.data & c.dst:
            n = max(n, 2 if c.kind in ('valu', 'mfma') else 1)
    return n


class Stream:
    def __init__(self, name=''):
        self.name = name
        self.items = []

    def emit(self, *lines):
        for l in lines:
            if isinstance(l, (list, tuple)):
                self.emit(*l)
            else:
                for x in l.split('\n'):
                    if x.strip():
                        self.items.append(x.strip())

    __call__ = emit

    def render(self, stats=None):
        out = []
        lg, vm = [], []
        marks = {}
        nnop = nwait = 0

        def add(text):
            out.append(I(text))

        for text in self.items:
            if text.startswith('@'):
                a = text.split()
                if a[0] == '@markvm':
                    marks[a[1]] = vm[-1] if vm else None
                elif a[0] == '@waitvm':
                    t = marks[a[1]]
                    if t is not None and any(t is x for x in vm):
                        k = [i for i, x in enumerate(vm) if x is t][0]
                        n = len(vm) - 1 - k
                        assert n <= 63, (self.name, text, n)
                        add(f's_waitcnt vmcnt({n})'); vm = vm[k + 1:]; nwait += 1
                elif a[0] == '@reset':
                    lg, vm = [], []
                else:
                    raise ValueError(text)
                continue
            ins = I(text)
            if ins.kind == 'label':
                out.append(ins); continue
            if ins.op == 's_waitcnt':
                m = re.search(r'vmcnt\((\d+)\)', text)
                if m:
                    n = int(m.group(1)); vm = vm[len(vm) - n:] if n < len(vm) and n > 0 else ([] if n == 0 else vm)
                m = re.search(r'lgkmcnt\((\d+)\)', text)
                if m:
                    n = int(m.group(1))
                    if n == 0:
                        lg = []
                    elif n < len(lg) and not any(x.kind == 'smem' for x in lg):
                        lg = lg[len(lg) - n:]
                out.append(ins); continue
            touch = ins.src | ins.dst
            w = []
            k = max([i for i, x in enumerate(vm) if x.dst & touch], default=-1)
            if k >= 0:
                n = min(len(vm) - 1 - k, 63)
                w.append(f'vmcnt({n})'); vm = vm[len(vm) - n:] if n else []
            k = max([i for i, x in enumerate(lg) if x.dst & touch], default=-1)
            if k >= 0:
                if any(x.kind == 'smem' for x in lg):
                    n = 0
                else:
                    n = min(len(lg) - 1 - k, 15)
                w.append(f'lgkmcnt({n})'); lg = lg[len(lg) - n:] if n else []
            if w:
                add('s_waitcnt ' + ' '.join(w)); nwait += 1
            need, dist = 0, 0
            for p in reversed(out):
                if p.kind == 'label':
                    continue
                r = need_states(p, ins) - dist
                need = max(need, r)
                dist += (int(p.ops[0], 0) + 1) if p.op == 's_nop' else 1
                if dist >= 12:
                    break
            if need > 0:
                add(f's_nop {need - 1}'); nnop += 1
            out.append(ins)
            if ins.kind == 'vmem':
                vm.append(ins)
            elif ins.kind in ('ds', 'smem'):
                lg.append(ins)
        if stats is not None:
            cnt = {}
            for x in out:
                cnt[x.kind] = cnt.get(x.kind, 0) + 1
            stats[self.name] = dict(cnt, nops=nnop, waits=nwait)
        return '\n'.join(('' if x.kind == 'label' else '  ') + x.text for x in out) + '\n'


def interleave(main, fill, start=0, end=None, is_slot=None):
    is_slot = is_slot or (lambda t: t.startswith('v_mfma'))
    slots = [i for i, t in enumerate(main) if is_slot(t)]
    slots = slots[start:end]
    out, k = [], 0
    n = len(slots)
    pos = {s: idx for idx, s in enumerate(slots)}
    for i, t in enumerate(main):
        out.append(t)
        if i in pos:
            tgt = (pos[i] + 1) * len(fill) // n
            while k < tgt:
                out.append(fill[k]); k += 1
    out += fill[k:]
    return out


def vr(a, n=1):
    return f'v{a}' if n == 1 else f'v[{a}:{a + n - 1}]'


def sr(a, n=1):
    return f's{a}' if n == 1 else f's[{a}:{a + n - 1}]'


def f2h(x):
    import struct
    return '0x%08x' % struct.unpack('<I', struct.pack('<f', x))[0]
```

```python
import sys, math
from asmlib import *

NAME = 'parallel_sum__ssm_conv_s4d__mixer_channel_mlp__prompt'
LOG2E = 1.4426950408889634

WS_HP = 0x0
WS_W2P = 0x600000
WS_UT = 0x800000
WS_YT = 0xB00000
WS_KC = 0xE00000
WS_FL = 0x1000000
WS_SIZE = 0x1010000

SLOT = 40960
L_S = 3 * SLOT
S_SZ = 9216
L_PART = L_S + 3 * S_SZ
L_CS = L_PART + 1024
L_B1 = L_CS + 1024
L_END = L_B1 + 1024
P_STR = 336
P_SZ = 64 * P_STR
L_YC = 4 * P_SZ
L_YR = L_YC + 80 * 144
assert L_YR + 64 * 176 <= L_S

sWAVE, sT, sJ, sRS = 3, 4, 5, 6
sPX, sPLA, sPAI, sPCR, sPCI, sPDT, sPD = 16, 18, 20, 22, 24, 26, 28
sPW1, sPB1, sPW2, sPB2, sPOUT, sPDBG, sPWS = 32, 34, 36, 38, 40, 42, 44


def srd(a, d, ptr, size):
    a(f's_mov_b32 s{d}, s{ptr}', f's_and_b32 s{d+1}, s{ptr+1}, 0xffff',
      f's_mov_b32 s{d+2}, {size}', f's_mov_b32 s{d+3}, 0x20000')


def prologue(a, endlabel):
    a('s_load_dwordx16 s[16:31], s[0:1], 0',
      's_load_dwordx8 s[32:39], s[0:1], 64',
      's_load_dwordx4 s[40:43], s[0:1], 96',
      's_load_dwordx2 s[44:45], s[0:1], 112',
      's_cmp_ge_u32 s2, 256',
      f's_cbranch_scc1 {endlabel}',
      'v_lshrrev_b32 v1, 6, v0',
      'v_and_b32 v0, 63, v0',
      's_and_b32 s7, s2, 7',
      f'v_readfirstlane_b32 s{sWAVE}, v1',
      's_lshr_b32 s8, s2, 3',
      's_lshr_b32 s9, s7, 1',
      's_lshl_b32 s9, s9, 3',
      's_and_b32 s10, s8, 7',
      f's_add_u32 s{sT}, s9, s10',
      's_and_b32 s9, s7, 1',
      's_lshl_b32 s9, s9, 2',
      's_lshr_b32 s10, s8, 3',
      f's_add_u32 s{sJ}, s9, s10',
      f's_mul_i32 s9, s{sT}, 43',
      's_lshr_b32 s9, s9, 7',
      's_mul_i32 s10, s9, 3',
      f's_sub_u32 s{sRS}, s{sT}, s10')


def bar(a):
    a('s_barrier')


def p1_loader(a):
    X, W = 48, 52
    a('s_waitcnt lgkmcnt(0)')
    srd(a, X, sPX, 2621440)
    srd(a, W, sPW1, 1966080)
    a('v_lshrrev_b32 v1, 3, v0',
      'v_and_b32 v2, 7, v0',
      'v_lshrrev_b32 v3, 1, v1',
      'v_xor_b32 v4, v2, v3',
      'v_xor_b32 v5, 4, v4',
      'v_mul_u32_u24 v6, 1280, v1',
      'v_lshl_add_u32 v4, v4, 4, v6',
      'v_lshl_add_u32 v5, v5, 4, v6',
      'v_and_b32 v3, 1, v3',
      'v_lshlrev_b32 v3, 2, v3',
      'v_xor_b32 v3, v2, v3',
      'v_mul_u32_u24 v6, 3072, v1',
      'v_lshl_add_u32 v6, v3, 4, v6')
    a(f's_lshr_b32 s60, s{sJ}, 2',
      f's_and_b32 s61, s{sJ}, 3',
      's_lshl_b32 s61, s61, 1',
      f's_mul_i32 s62, s{sT}, {64*1280}',
      f's_mul_i32 s63, s{sJ}, 384',
      's_and_b32 s64, s9, 3')

    def xstage(st):
        a(f's_xor_b32 s65, s60, {st}', 's_mul_i32 s65, s65, 640', 's_add_u32 s65, s65, s62')
        for pp in range(8):
            a(f's_add_u32 s66, s61, {pp}', 's_and_b32 s66, s66, 7',
              f's_mul_i32 s67, s66, {8*1280}', 's_add_u32 s67, s67, s65',
              's_lshl_b32 s66, s66, 10', f's_add_u32 m0, s66, {st*SLOT}')
            for q in range(5):
                a(f'buffer_load_dwordx4 v{4 + (pp & 1)}, s[{X}:{X+3}], s67 offen offset:{q*128} lds')
                if q < 4:
                    a(f's_add_u32 m0, m0, {8192-128}')
        a(f'@markvm st{st}')

    def wstage(st):
        sg = st - 2
        slot = (st % 3) * SLOT
        a(f's_add_u32 s65, s{sRS}, {sg//2}', 's_cmp_ge_u32 s65, 3', 's_cselect_b32 s66, 3, 0', 's_sub_u32 s65, s65, s66',
          's_lshl_b32 s65, s65, 7', 's_add_u32 s65, s65, s63',
          f's_xor_b32 s66, s60, {sg & 1}', f's_mul_i32 s66, s66, {320*3072}', 's_add_u32 s65, s65, s66')
        for g in range(5):
            a(f's_add_u32 s66, s64, {g}', 's_cmp_ge_u32 s66, 5', 's_cselect_b32 s67, 5, 0', 's_sub_u32 s66, s66, s67',
              f's_mul_i32 s67, s66, {64*3072}', 's_add_u32 s67, s67, s65',
              's_lshl_b32 s66, s66, 13', f's_add_u32 m0, s66, {slot}')
            for i in range(8):
                a(f'buffer_load_dwordx4 v6, s[{W}:{W+3}], s67 offen lds')
                if i < 7:
                    a('s_add_u32 m0, m0, 1024', f's_add_u32 s67, s67, {8*3072}')
        a(f'@markvm st{st}')

    xstage(0); xstage(1)
    for k in range(8):
        a(f'@waitvm st{k}')
        bar(a)
        if k + 2 < 8:
            wstage(k + 2)
    bar(a)


def rbf(a, v):
    a(f'v_cvt_pk_bf16_f32 v{v}, v{v}, v{v}', f'v_and_b32 v{v}, 0xffff0000, v{v}')


def ln_math(a, vs, vq, t, o, full):
    mu, var, m, d = t, t + 1, t + 2, t + 3
    a(f'v_mul_f32 v{mu}, {f2h(1/640)}, v{vs}',
      f'v_mul_f32 v{var}, {f2h(1/640)}, v{vq}',
      f'v_fma_f32 v{var}, -v{mu}, v{mu}, v{var}',
      f'v_max_f32 v{var}, 0, v{var}',
      f'v_mov_b32 v{m}, v{mu}')
    rbf(a, m)
    a(f'v_mov_b32 v{d}, v{var}')
    rbf(a, d)
    a(f'v_add_f32 v{d}, {f2h(1e-5)}, v{d}')
    rbf(a, d)
    a(f'v_sqrt_f32 v{d}, v{d}')
    rbf(a, d)
    a(f'v_rcp_f32 v{o}, v{d}',
      f'v_mul_f32 v{o+1}, v{m}, v{o}')
    if not full:
        a(f'v_sub_f32 v{o+1}, 0, v{o+1}')
        return
    a(f'v_sub_f32 v{mu}, v{mu}, v{m}',
      f'v_mul_f32 v{mu}, v{mu}, v{o}',
      f'v_mul_f32 v{var}, v{var}, v{o}',
      f'v_mul_f32 v{var}, v{var}, v{o}')
    rbf(a, mu)
    rbf(a, var)
    a(f'v_add_f32 v{var}, {f2h(1e-5)}, v{var}')
    rbf(a, var)
    a(f'v_sqrt_f32 v{var}, v{var}')
    rbf(a, var)
    a(f'v_rcp_f32 v{var}, v{var}',
      f'v_add_f32 v{mu}, v{mu}, v{o+1}',
      f'v_mul_f32 v{o+2}, v{o}, v{var}',
      f'v_mul_f32 v{o+3}, v{mu}, v{var}',
      f'v_sub_f32 v{o+3}, 0, v{o+3}')


def p1_gemm(a, sc=''):
    WS, B1 = 48, 52
    XR = 96
    ACC = [64, 80]
    WF = 48
    CSA = 44
    SEL = 40
    vXA = 4
    vWA = 8
    vHO = 10
    vEA = 11
    vSS = 14
    vCA = 3
    TMP = 16
    a(f's_lshr_b32 s60, s{sWAVE}, 1',
      f's_and_b32 s61, s{sWAVE}, 1',
      's_xor_b32 s62, s60, s61')
    a('v_and_b32 v1, 31, v0', 'v_lshrrev_b32 v2, 5, v0',
      's_lshl_b32 s63, s60, 12',
      'v_lshlrev_b32 v16, 7, v1', 'v_add_u32 v16, s63, v16',
      'v_bfe_u32 v17, v1, 1, 3')
    for m in range(4):
        a(f's_lshl_b32 s63, s62, 2', f's_xor_b32 s63, s63, {2*m}',
          f's_mul_i32 s64, s62, {(2 if m < 2 else 3)*8192}',
          'v_add_u32 v18, s63, v2', 'v_xor_b32 v18, v18, v17',
          'v_lshl_add_u32 v18, v18, 4, v16', f'v_add_u32 v{vXA+m}, s64, v18')
    a(f's_mul_i32 s65, s62, {5*8192}',
      f's_sub_u32 s73, {3*8192}, s65', f's_sub_u32 s74, {2*8192}, s65',
      f's_sub_u32 s75, {SLOT}, s73', f's_sub_u32 s76, {SLOT}, s74')
    a('v_bfe_u32 v16, v0, 2, 2',
      'v_lshl_add_u32 v17, v2, 3, v16',
      'v_lshlrev_b32 v17, 7, v17',
      'v_lshrrev_b32 v16, 1, v16',
      'v_xor_b32 v16, s61, v16',
      'v_lshl_add_u32 v17, v16, 6, v17',
      'v_bfe_u32 v16, v0, 4, 1',
      'v_lshl_add_u32 v17, v16, 5, v17',
      'v_and_b32 v16, 3, v0',
      'v_lshl_add_u32 v17, v16, 3, v17',
      f's_mul_i32 s63, s62, {10*2048}',
      f's_add_u32 s64, s63, {2*SLOT}',
      f'v_add_u32 v{vWA}, s64, v17',
      f's_sub_u32 s64, {2*SLOT + 10*2048}, s63',
      f'v_add_u32 v{vWA+1}, s64, v17')
    a('v_bfe_u32 v16, v0, 4, 1', 'v_lshlrev_b32 v16, 10, v16',
      'v_lshl_add_u32 v16, v2, 8, v16',
      'v_and_b32 v17, 15, v0', 'v_lshl_add_u32 v16, v17, 4, v16',
      's_lshl_b32 s63, s60, 11', f'v_add_u32 v{vHO}, s63, v16')
    a('v_bfe_u32 v16, v0, 4, 1', 'v_cmp_eq_u32 vcc, v16, v17', 'v_mov_b32 v18, 0x3f803f80',
      f'v_cndmask_b32 v{SEL}, 0, v18, vcc')
    a(*[f'v_mov_b32 v{SEL+i}, v{SEL}' for i in (1, 2, 3)])
    a('s_waitcnt lgkmcnt(0)')
    srd(a, WS, sPWS, WS_SIZE)
    srd(a, B1, sPB1, 3072)
    a(f's_mul_i32 s63, s{sJ}, 384', f's_lshl_b32 s64, s{sWAVE}, 7', 's_add_u32 s63, s63, s64',
      'v_lshlrev_b32 v16, 1, v0', 'v_mov_b32 v18, 0', 'v_mov_b32 v19, 0',
      f'buffer_load_short_d16_hi v18, v16, s[{B1}:{B1+3}], s63 offen',
      f's_lshl_b32 s64, s{sWAVE}, 8', f's_add_u32 s64, s64, {L_CS}', 'v_lshlrev_b32 v16, 2, v0', 'v_add_u32 v16, s64, v16',
      'ds_write_b32 v16, v19',
      f'ds_write_b32 v16, v18 offset:{L_B1-L_CS}')
    a(f's_mov_b32 s70, {f2h(-2*LOG2E*0.7978845608028654*0.044715)}', f's_mov_b32 s71, {f2h(-2*LOG2E*0.7978845608028654)}',
      's_mov_b32 s72, 0x3f803f80')
    S0, Q0 = 20, 22
    a(*[f'v_mov_b32 v{r}, 0' for r in range(20, 24)])
    a('s_waitcnt lgkmcnt(0)')
    for st in range(2):
        bar(a)
        for u in range(20):
            if u == 10:
                a(*[f'v_add_u32 v{vXA+m}, s{73 + m//2}, v{vXA+m}' for m in range(4)])
            r = XR + 4 * (20 * st + u)
            ln = (u >> 2) - (0 if u < 10 else (3 if (u & 3) < 2 else 2))
            a(f'ds_read_b128 {vr(r,4)}, v{vXA + (u & 3)} offset:{ln*8192}')
        if st == 0:
            a(*[f'v_add_u32 v{vXA+m}, s{75 + m//2}, v{vXA+m}' for m in range(4)])
        for u in range(10):
            r = XR + 4 * (20 * st + u)
            for i in range(4):
                a(f'v_dot2c_f32_bf16 v{S0 + (i & 1)}, s72, v{r+i}', f'v_dot2c_f32_bf16 v{Q0 + (i & 1)}, v{r+i}, v{r+i}')
        if st == 1:
            a(f'v_add_f32 v20, v20, v21', 'v_add_f32 v21, v22, v23',
              'v_mov_b32 v22, v20', 'v_mov_b32 v23, v21',
              'v_permlane32_swap_b32 v20, v22', 'v_permlane32_swap_b32 v21, v23',
              'v_add_f32 v20, v20, v22', 'v_add_f32 v21, v21, v23',
              's_lshl_b32 s63, s60, 8', f's_add_u32 s63, s63, {L_PART}', 'v_lshlrev_b32 v16, 3, v1', 'v_add_u32 v16, s63, v16',
              's_lshl_b32 s64, s61, 9', 'v_add_u32 v17, s64, v16',
              'ds_write_b64 v17, v[20:21]')
        a('s_waitcnt lgkmcnt(0)')
    stats = Stream()
    stats('ds_read_b64 v[20:21], v16', 'ds_read_b64 v[22:23], v16 offset:512',
          'v_add_f32 v20, v20, v22', 'v_add_f32 v21, v21, v23')
    ln_math(stats, 20, 21, 24, 12, True)

    def epilogue(o):
        e = Stream()
        acc = ACC[o & 1]
        e(f's_add_u32 s63, s{sRS}, {o}', 's_cmp_ge_u32 s63, 3', 's_cselect_b32 s64, 3, 0', 's_sub_u32 s63, s63, s64',
          's_lshl_b32 s63, s63, 1', 's_add_u32 s63, s63, s61',
          's_lshl_b32 s64, s63, 7', f's_add_u32 s64, s64, {L_CS}',
          f'v_lshl_add_u32 v{vEA}, v2, 4, s64',
          f's_mul_i32 s64, s{sT}, 48', f's_mul_i32 s66, s{sJ}, 6', 's_add_u32 s64, s64, s66', 's_add_u32 s64, s64, s63',
          's_lshl_b32 s66, s64, 12')
        C, B, P, H = TMP, TMP + 4, TMP + 16, TMP + 20

        def rd(q):
            return [f'ds_read_b128 {vr(C + 8*(q & 1), 4)}, v{vEA} offset:{q*32}',
                    f'ds_read_b128 {vr(B + 8*(q & 1), 4)}, v{vEA} offset:{q*32 + L_B1 - L_CS}']
        e(rd(0))
        for q in range(4):
            if q < 3:
                e(rd(q + 1))
            c, b = C + 8 * (q & 1), B + 8 * (q & 1)
            A = acc + 4 * q
            for hf in (0, 2):
                e(f'v_pk_fma_f32 {vr(b+hf,2)}, {vr(vSS,2)}, {vr(c+hf,2)}, {vr(b+hf,2)} op_sel:[1,0,0] op_sel_hi:[1,1,1]')
            for hf in (0, 2):
                e(f'v_pk_fma_f32 {vr(b+hf,2)}, {vr(A+hf,2)}, {vr(vSS,2)}, {vr(b+hf,2)} op_sel_hi:[1,0,1]')
            for hf in (0, 2):
                e(f'v_pk_mul_f32 {vr(P+hf,2)}, {vr(b+hf,2)}, {vr(b+hf,2)}')
            for hf in (0, 2):
                e(f'v_pk_fma_f32 {vr(P+hf,2)}, {vr(P+hf,2)}, s[70:71], s[70:71] op_sel:[0,0,1] op_sel_hi:[1,0,1]')
            for hf in (0, 2):
                e(f'v_pk_mul_f32 {vr(P+hf,2)}, {vr(P+hf,2)}, {vr(b+hf,2)}')
            e(*[f'v_exp_f32 v{P+i}, v{P+i}' for i in range(4)])
            for hf in (0, 2):
                e(f'v_pk_add_f32 {vr(P+hf,2)}, {vr(P+hf,2)}, 1.0 op_sel_hi:[1,0]')
            e(*[f'v_rcp_f32 v{P+i}, v{P+i}' for i in range(4)])
            for hf in (0, 2):
                e(f'v_pk_mul_f32 {vr(P+hf,2)}, {vr(P+hf,2)}, {vr(b+hf,2)}')
            for hf in (0, 2):
                e(f'v_cvt_pk_bf16_f32 v{H + 2*(q & 1) + hf//2}, v{P+hf}, v{P+hf+1}')
            if q & 1:
                e(f'buffer_store_dwordx4 {vr(H,4)}, v{vHO}, s[{WS}:{WS+3}], s66 offen offset:{(q >> 1)*512} {sc}')
        return e.items

    PF = 3

    def wread(gs):
        u = gs % 20
        r = WF + 4 * (gs & 3)
        va = vWA + (1 if u >= 10 else 0)
        return [f'ds_read_b64_tr_b16 {vr(r,2)}, v{va} offset:{(u % 10)*2048}',
                f'ds_read_b64_tr_b16 {vr(r+2,2)}, v{va} offset:{(u % 10)*2048+512}']

    def stage_adv(sg):
        d = (((sg + 2) % 3) - ((sg + 1) % 3)) * SLOT
        op = 'v_add_u32' if d > 0 else 'v_subrev_u32'
        return [f'{op} v{vWA+i}, {abs(d)}, v{vWA+i}' for i in range(2)]

    bar(a)
    for gs in range(PF):
        a(wread(gs))
    for sg in range(6):
        o = sg // 2
        acc = ACC[o & 1]
        m = []
        for u in range(20):
            gs = sg * 20 + u
            nx = gs + PF
            if nx % 20 == 0:
                m += ['s_waitcnt lgkmcnt(0)', 's_barrier']
                if nx < 120:
                    m += stage_adv(sg + 1)
            if nx < 120:
                m += wread(nx)
            wf = WF + 4 * (gs & 3)
            xr = XR + 4 * ((sg & 1) * 20 + u)
            c = '0' if (sg & 1) == 0 and u == 0 else vr(acc, 16)
            m.append(f'v_mfma_f32_32x32x16_bf16 {vr(acc,16)}, {vr(wf,4)}, {vr(xr,4)}, {c}')
            if u < 10:
                c = '0' if (sg & 1) == 0 and u == 0 else vr(CSA, 4)
                m.append(f'v_mfma_f32_16x16x32_bf16 {vr(CSA,4)}, {vr(SEL,4)}, {vr(wf,4)}, {c}')
            if (sg & 1) and u == 12:
                m += [f's_add_u32 s67, s{sRS}, {o}', 's_cmp_ge_u32 s67, 3', 's_cselect_b32 s68, 3, 0', 's_sub_u32 s67, s67, s68',
                      's_lshl_b32 s67, s67, 1', 's_add_u32 s67, s67, s61', 's_lshl_b32 s67, s67, 7', f's_add_u32 s67, s67, {L_CS}',
                      f'v_lshl_add_u32 v{vCA}, v0, 2, s67',
                      's_mov_b64 exec, 0xffff',
                      f'ds_add_f32 v{vCA}, v{CSA}', f'ds_add_f32 v{vCA}, v{CSA+1} offset:64',
                      's_mov_b64 exec, -1']
        big = lambda t: t.startswith('v_mfma_f32_32x32')
        if sg == 0:
            m = interleave(m, stats.items, 0, 16, big)
        elif sg in (2, 4):
            m = interleave(m, epilogue(o - 1), 1, 17, big)
        a(m)
    a(epilogue(2))


def s_setup(a):
    a(f's_sub_u32 s60, s{sWAVE}, 4',
      f's_mul_i32 s61, s60, {S_SZ}', f's_add_u32 s61, s61, {L_S}',
      f's_mul_i32 s62, s{sJ}, 80', f's_lshr_b32 s63, s{sT}, 1', 's_mul_i32 s63, s63, 5', 's_add_u32 s62, s62, s63',
      f's_and_b32 s63, s{sT}, 1', 's_mul_i32 s63, s63, 3', 's_add_u32 s62, s62, s63', 's_add_u32 s62, s62, s60')


UT_RAW = 200
BOX = 228
FIX = 252


def ut_raw(a, ngroups):
    a('v_bfe_u32 v2, v0, 2, 2',
      'v_lshrrev_b32 v3, 4, v0',
      'v_lshl_add_u32 v3, v3, 4, v2',
      'v_bfe_u32 v4, v0, 1, 1',
      'v_and_b32 v5, 1, v0',
      'v_lshlrev_b32 v5, 3, v5',
      'v_lshl_add_u32 v5, v3, 7, v5',
      'v_lshrrev_b32 v2, 1, v2')
    for gi in range(ngroups):
        a(f's_and_b32 s63, s{sJ}, 3', 's_mul_i32 s63, s63, 5', 's_add_u32 s63, s63, s60', f's_add_u32 s63, s63, {3*gi}',
          's_min_u32 s63, s63, 19',
          's_lshr_b32 s64, s63, 2', 's_lshl_b32 s64, s64, 13',
          's_and_b32 s63, s63, 3', 's_lshl_b32 s63, s63, 1',
          'v_add_u32 v6, s63, v4', 'v_xor_b32 v6, v6, v2', 'v_add_u32 v7, s64, v5')
        for m in range(4):
            a(f'v_xor_b32 v8, {2*m}, v6', 'v_lshl_add_u32 v8, v8, 4, v7',
              f'ds_read_b64_tr_b16 {vr(UT_RAW + 8*gi + 2*m, 2)}, v8 offset:{m*512}')
    a('s_waitcnt lgkmcnt(0)')


def ut_finish(a, ngroups, WS, T0, sc=''):
    t = T0
    a(f'v_lshlrev_b32 v{t}, 3, v0', f'v_add_u32 v{t}, {L_PART}, v{t}',
      f'ds_read_b64 {vr(t+2,2)}, v{t}', f'ds_read_b64 {vr(t+4,2)}, v{t} offset:512',
      f'v_add_f32 v{t+2}, v{t+2}, v{t+4}', f'v_add_f32 v{t+3}, v{t+3}, v{t+5}')
    ln_math(a, t + 2, t + 3, t + 4, t + 8, False)
    a(f'v_lshl_add_u32 v{t}, v0, 2, s61',
      f'ds_write_b32 v{t}, v{t+8} offset:2304', f'ds_write_b32 v{t}, v{t+9} offset:2560',
      f'v_lshrrev_b32 v{t+1}, 4, v0', f'v_lshl_add_u32 v{t}, v{t+1}, 6, s61')
    SS, TT = t + 8, t + 24
    for m in range(4):
        a(f'ds_read_b128 {vr(SS+4*m,4)}, v{t} offset:{2304+16*m}', f'ds_read_b128 {vr(TT+4*m,4)}, v{t} offset:{2560+16*m}')
    a(f'v_and_b32 v{t}, 15, v0', f'v_mul_u32_u24 v{t}, 144, v{t}', f'v_lshl_add_u32 v{t}, v{t+1}, 5, v{t}', f'v_add_u32 v{t}, s61, v{t}',
      f'v_lshrrev_b32 v{t+2}, 3, v0', f'v_and_b32 v{t+3}, 7, v0', f'v_lshlrev_b32 v{t+3}, 4, v{t+3}',
      f'v_mul_u32_u24 v{t+1}, 144, v{t+2}', f'v_add3_u32 v{t+1}, v{t+1}, v{t+3}, s61',
      f'v_lshl_add_u32 v{t+2}, v{t+2}, 12, v{t+3}')
    for gi in range(ngroups):
        R = UT_RAW + 8 * gi
        for d in range(8):
            a(f'v_lshlrev_b32 v{t+4}, 16, v{R+d}', f'v_and_b32 v{t+5}, 0xffff0000, v{R+d}',
              f'v_pk_fma_f32 {vr(t+4,2)}, {vr(t+4,2)}, {vr(SS+2*d,2)}, {vr(TT+2*d,2)}',
              f'v_cvt_pk_bf16_f32 v{R+d}, v{t+4}, v{t+5}')
        a(f'ds_write_b128 v{t}, {vr(R,4)}', f'ds_write_b128 v{t}, {vr(R+4,4)} offset:16',
          f'ds_read_b128 {vr(R,4)}, v{t+1}', f'ds_read_b128 {vr(R+4,4)}, v{t+1} offset:{8*144}')
        a(f's_add_u32 s63, s60, {3*gi}', 's_lshl_b32 s64, s63, 16', f's_mul_i32 s65, s{sJ}, {80*4096}', 's_add_u32 s64, s64, s65',
          f's_lshl_b32 s65, s{sT}, 7', 's_add_u32 s64, s64, s65', f's_add_u32 s64, s64, {WS_UT}',
          's_cmp_ge_u32 s63, 5', f's_cselect_b32 s64, {WS_SIZE}, s64', 's_add_u32 s65, s64, 32768',
          f'buffer_store_dwordx4 {vr(R,4)}, v{t+2}, s[{WS}:{WS+3}], s64 offen {sc}',
          f'buffer_store_dwordx4 {vr(R+4,4)}, v{t+2}, s[{WS}:{WS+3}], s65 offen {sc}')


def const_frags(a):
    a('v_and_b32 v2, 15, v0', 'v_lshrrev_b32 v3, 4, v0', 'v_lshl_add_u32 v2, v3, 3, v2',
      's_mov_b32 s63, 0x8001', 's_mov_b32 s64, 0x10001', 'v_mov_b32 v5, 0')
    specs = [(4, 3, 8), (8, 5, 8), (12, 3, 8), (16, 5, 0), (8, 7, 8), (16, 9, 0)]
    lst = [(BOX + 4 * i, -off - (w - 1) // 2 - base, w, 0x3f80) for i, (off, w, base) in enumerate(specs)]
    lst.append((FIX, -12, 2, 0xffff))
    for reg, c, w, val in lst:
        a(f'v_add_u32 v3, {c + 32}, v2', 'v_min_u32 v3, 47, v3', f'v_mov_b32 v4, {(1 << w) - 1}',
          'v_lshlrev_b64 v[6:7], v3, v[4:5]')
        for d in range(4):
            a(f'v_bfe_u32 v{reg+d}, v7, {2*d}, 2', f'v_mul_u32_u24 v{reg+d}, s63, v{reg+d}',
              f'v_and_b32 v{reg+d}, s64, v{reg+d}', f'v_mul_u32_u24 v{reg+d}, {hex(val)}, v{reg+d}')


def cmul(d, x, w, t):
    return [f'v_pk_mul_f32 {vr(t,2)}, {vr(x,2)}, {vr(w,2)} op_sel:[1,1] op_sel_hi:[0,1]',
            f'v_pk_fma_f32 {vr(d,2)}, {vr(x,2)}, {vr(w,2)}, {vr(t,2)} op_sel_hi:[1,0,1] neg_lo:[0,0,1]']


KD = 16
PAR = 32


def scal_bf16(a, sreg, ch):
    a(f's_bitcmp1_b32 s{ch}, 0', 's_cselect_b32 s63, 0, 16', f's_lshl_b32 s{sreg}, s{sreg}, s63', f's_and_b32 s{sreg}, s{sreg}, 0xffff0000')


def kgen_loads(a):
    P = 52
    a(*[f'v_mov_b32 v{PAR+i}, 0' for i in range(12)])
    a('v_lshlrev_b32 v1, 1, v0', 's_mul_i32 s65, s62, 384', 's_lshr_b32 s66, s62, 1', 's_lshl_b32 s66, s66, 2')
    a('s_waitcnt lgkmcnt(0)')
    a(f's_load_dword s67, s[{sPDT}:{sPDT+1}], s66', f's_load_dword s68, s[{sPD}:{sPD+1}], s66', f's_load_dword s69, s[{sPB2}:{sPB2+1}], s66')
    for k, ptr in enumerate((sPLA, sPAI, sPCR, sPCI)):
        srd(a, 72 + 4 * k, ptr, 245760)
    for c in range(3):
        for k in range(4):
            a(f'buffer_load_short_d16_hi v{PAR + 4*c + k}, v1, s[{72+4*k}:{75+4*k}], s65 offen offset:{128*c}')


def kgen_body():
    pre = Stream()
    vDT, vRA, vWB = 44, 45, 46
    scal_bf16(pre, 67, 62); scal_bf16(pre, 68, 62); scal_bf16(pre, 69, 62)
    pre(f'v_mov_b32 v{vDT}, {f2h(LOG2E)}', f'v_mul_f32 v{vDT}, s67, v{vDT}', f'v_exp_f32 v{vDT}, v{vDT}')
    rbf(pre, vDT)
    pre(f'v_and_b32 v2, 31, v0', 'v_mul_u32_u24 v2, 272, v2', 'v_lshrrev_b32 v3, 5, v0', 'v_lshl_add_u32 v2, v3, 4, v2',
        f'v_add_u32 v{vRA}, s61, v2', f'v_lshl_add_u32 v{vWB}, v0, 2, s61')
    pre(*[f'v_add_u32 v{vWB+i}, {4*272*i}, v{vWB}' for i in range(1, 8)])
    pre(f's_mov_b32 s70, {f2h(-LOG2E)}', f's_mov_b32 s71, {f2h(1/(2*math.pi))}')
    AB, W1, W8, W256, T = 54, 56, 58, 60, 62
    E = 64
    PK = 88
    AF = 96
    BF = 128
    chunks = []
    for c in range(3):
        s = Stream()
        la, ai, cr, ci = PAR + 4 * c, PAR + 4 * c + 1, PAR + 4 * c + 2, PAR + 4 * c + 3
        s(f'v_mul_f32 v{la}, {f2h(LOG2E)}, v{la}', f'v_exp_f32 v{la}, v{la}')
        s(f'v_add_f32 v{T}, v{vDT}, v{vDT}')
        rbf(s, la)
        s(f'v_pk_mul_f32 {vr(E,2)}, {vr(cr,2)}, {vr(T,2)} op_sel_hi:[1,0]',
          f'v_pk_mul_f32 {vr(AB,2)}, {vr(la,2)}, {vr(vDT,2)} op_sel_hi:[1,0]',
          f'v_pk_mul_f32 {vr(AB,2)}, {vr(AB,2)}, s[70:71]')

        def direct(dst, p):
            src = AB
            if p != 1:
                s(f'v_mul_f32 v{T}, {f2h(p)}, v{AB}', f'v_mul_f32 v{T+1}, {f2h(p)}, v{AB+1}')
                src = T
            s(f'v_rndne_f32 v{dst}, v{src+1}', f'v_exp_f32 v{T}, v{src}', f'v_sub_f32 v{T+1}, v{src+1}, v{dst}',
              f'v_cos_f32 v{dst}, v{T+1}', f'v_sin_f32 v{dst+1}, v{T+1}',
              f'v_pk_mul_f32 {vr(dst,2)}, {vr(dst,2)}, {vr(T,2)} op_sel_hi:[1,0]')
        direct(W1, 1)
        direct(W256, 256)
        s(cmul(W8, W1, W1, T)); s(cmul(W8, W8, W8, T)); s(cmul(W8, W8, W8, T))
        pk = [0]

        def put(rowa, ea, rowb, eb, neg):
            n = '-' if neg else ''
            p = PK + 2 * (pk[0] & 1); pk[0] += 1
            if ea == 'one':
                s(f'v_mov_b32 v{p}, 0x3f80')
            else:
                s(f'v_cvt_pk_bf16_f32 v{p}, v{ea}, {n}v{ea+1}')
            if rowb is None:
                s(f'ds_write_b32 v{vWB + rowa//4}, v{p} offset:{(rowa % 4)*272}')
            else:
                assert rowa // 4 == rowb // 4
                s(f'v_cvt_pk_bf16_f32 v{p+1}, v{eb}, {n}v{eb+1}',
                  f'ds_write2_b32 v{vWB + rowa//4}, v{p}, v{p+1} offset0:{(rowa % 4)*68} offset1:{(rowb % 4)*68}')
        e0, e2, e4, e6, eo = E, E + 2, E + 4, E + 6, E + 8
        ev = [e0, e2, e4, e6]
        for i in range(4):
            s(cmul(eo, ev[i], W1, T))
            put(2 * i, ev[i], 2 * i + 1, eo, True)
            if i < 3:
                s(cmul(ev[i + 1], eo, W1, T))
        for i in range(4):
            s(cmul(ev[i], ev[i], W256, T))
        put(8, e0, 9, e2, True); put(12, e4, 13, e6, True)
        s(cmul(e0, e0, W256, T))
        s(cmul(e4, e4, W256, T))
        put(18, e0, None, None, True)
        s(cmul(e0, e0, W8, T))
        s(cmul(e6, e4, W256, T))
        s(cmul(e2, e0, W256, T))
        put(10, e4, 11, e6, True); put(14, e0, 15, e2, True)
        s(cmul(e0, e2, W256, T)); s(cmul(e2, e0, W256, T))
        put(16, e0, 17, e2, True)
        s(cmul(e0, e2, W256, T)); s(cmul(e2, e0, W256, T))
        put(20, e0, 21, e2, True)
        for k in range(8):
            s(f'ds_read_b128 {vr(AF+4*k,4)}, v{vRA} offset:{32*k}')
        put(0, 'one', 1, W8, False)
        prev = W8
        for i in range(1, 16):
            s(cmul(e0, prev, W8, T)); s(cmul(e2, e0, W8, T))
            put(2 * i, e0, 2 * i + 1, e2, False)
            prev = e2
        for k in range(8):
            s(f'ds_read_b128 {vr(BF+4*k,4)}, v{vRA} offset:{32*k}')
        for k in range(8):
            cc = '0' if c == 0 and k == 0 else vr(KD, 16)
            s(f'v_mfma_f32_32x32x16_bf16 {vr(KD,16)}, {vr(AF+4*k,4)}, {vr(BF+4*k,4)}, {cc}')
        chunks.append(s.items)
    return pre.items, chunks


AK = 32
T2 = 100
T3 = 124
CACC = 140
CB = 172
ZD = 204
ZF = 220
CP, C2, C3 = 1344, 5376, 7424


def build_frags(a):
    a('v_mov_b32 v4, 0', 'v_mov_b32 v5, 0', 'v_mov_b32 v6, 0', 'v_mov_b32 v7, 0',
      'v_lshl_add_u32 v2, v0, 4, s61')
    for i in range(9):
        a(f'ds_write_b128 v2, v[4:7] offset:{1024*i}')
    a('v_and_b32 v3, 31, v0', 'v_lshrrev_b32 v1, 5, v0', 'v_lshl_add_u32 v8, v3, 1, v1',
      'v_lshlrev_b32 v9, 3, v8', 'v_sub_u32 v9, s61, v9',
      'v_cmp_eq_u32 vcc, 0, v0', 'v_mov_b32 v10, s68', 'v_cndmask_b32 v10, 0, v10, vcc',
      f'v_add_f32 v{KD}, v{KD}, v10')

    def seq(xs, p0, p1, mid):
        for rho in range(4):
            x = xs + rho
            o = rho * CP + 2 * x
            if x % 4 == 0:
                a(f'ds_write_b64 v9, {vr(p0,2)} offset:{o}')
            elif x % 2 == 0:
                a(f'ds_write_b32 v9, v{p0} offset:{o}', f'ds_write_b32 v9, v{p1} offset:{o+4}')
            else:
                a(f'ds_write_b16 v9, v{p0} offset:{o}', f'ds_write_b32 v9, v{mid} offset:{o+2}', f'ds_write_b16_d16_hi v9, v{p1} offset:{o+6}')
    a(f'v_cvt_pk_bf16_f32 v4, v{KD+5}, v{KD+4}', f'v_cvt_pk_bf16_f32 v5, v{KD+4}, v{KD+4}')
    seq(282, 4, 5, 5)
    a(f'v_cvt_pk_bf16_f32 v6, v{KD+10}, v{KD+10}', f'v_cvt_pk_bf16_f32 v7, v{KD+10}, v{KD+10}', 's_mov_b64 exec, 1')
    seq(26, 6, 7, 7)
    a('s_mov_b64 exec, -1')
    a(f'v_cvt_pk_bf16_f32 v10, v{KD+3}, v{KD+2}', f'v_cvt_pk_bf16_f32 v11, v{KD+1}, v{KD}', f'v_cvt_pk_bf16_f32 v12, v{KD+2}, v{KD+1}')
    seq(537, 10, 11, 12)
    a(f'v_cvt_pk_bf16_f32 v4, v{KD+6}, v{KD+7}', f'v_cvt_pk_bf16_f32 v5, v{KD+8}, v{KD+9}',
      'v_and_b32 v6, 3, v8', 'v_lshlrev_b32 v6, 9, v6', 'v_lshrrev_b32 v7, 2, v8', 'v_lshlrev_b32 v7, 1, v7', 'v_sub_u32 v6, v6, v7',
      'v_add_u32 v6, s61, v6')
    for sg in range(4):
        o = C2 + 2 * (76 - 32) + 130 * sg
        a(f'ds_write_b16 v6, v4 offset:{o}', f'ds_write_b16_d16_hi v6, v4 offset:{o-32}')
    a('v_and_b32 v6, 1, v3', 'v_mul_u32_u24 v6, 640, v6', 'v_and_b32 v7, 30, v3', 'v_lshl_add_u32 v7, v1, 6, v7', 'v_sub_u32 v6, v6, v7',
      'v_add_u32 v6, s61, v6')
    for sg in range(4):
        o = C3 + 2 * (124 - 64) + 162 * sg
        a(f'ds_write_b16 v6, v5 offset:{o}', f'ds_write_b16_d16_hi v6, v5 offset:{o-32}')
    a('v_readlane_b32 s63, v4, 63', 's_pack_hh_b32_b16 s63, s63, s63')
    a(*[f'v_and_b32 v{FIX+d}, s63, v{FIX+d}' for d in range(4)])
    a('v_and_b32 v2, 3, v0', 'v_and_b32 v3, 12, v0', 'v_lshrrev_b32 v4, 4, v0',
      f'v_mul_u32_u24 v5, {CP}, v2', 'v_lshl_add_u32 v6, v4, 3, v3', 'v_lshlrev_b32 v6, 1, v6', 'v_sub_u32 v5, v5, v6',
      'v_add_u32 v5, s61, v5')
    for t in range(17):
        o = 2 * (548 - 32 * t)
        a(f'ds_read_b64 {vr(AK+4*t,2)}, v5 offset:{o}', f'ds_read_b64 {vr(AK+4*t+2,2)}, v5 offset:{o+8}')
    a('v_lshlrev_b32 v6, 2, v4', 'v_sub_u32 v6, v6, v3', 'v_lshlrev_b32 v6, 1, v6', 'v_add_u32 v6, s61, v6',
      'v_lshl_add_u32 v7, v2, 7, v6', 'v_mul_u32_u24 v8, 160, v2', 'v_add_u32 v8, v8, v6')
    for dl in (2, 3, 4):
        for pr in range(2):
            r = T2 + 4 * (2 * (dl - 2) + pr)
            for f in range(2):
                a(f'ds_read_b64 {vr(r+2*f,2)}, v7 offset:{C2 + (2*pr+f)*512 + 2*(76-16*dl)}')
    for dl in (4, 5, 6, 7):
        r = T3 + 4 * (dl - 4)
        for f in range(2):
            a(f'ds_read_b64 {vr(r+2*f,2)}, v8 offset:{C3 + f*640 + 2*(124-16*dl)}')
    a('v_mov_b32 v4, 0', 'v_mov_b32 v5, 0', 'v_lshl_add_u32 v2, v0, 3, s61', 'ds_write_b64 v2, v[4:5]')
    a(*[f'v_mov_b32 v{CACC+i}, s69' for i in range(32)])


def conv_load_u(a, WS, sc=''):
    a('v_lshlrev_b32 v2, 4, v0', 's_lshl_b32 s63, s62, 12', f's_add_u32 s63, s63, {WS_UT}')
    for i in range(4):
        a(f'buffer_load_dwordx4 {vr(CB+4*i,4)}, v2, s[{WS}:{WS+3}], s63 offen offset:{1024*i} {sc}')


def conv_body(a, WS, sc=''):
    a('v_add_u32 v3, s61, v2')
    for i in range(4):
        a(f'ds_write_b128 v3, {vr(CB+4*i,4)} offset:{512+1024*i}')
    a('v_and_b32 v4, 15, v0', 'v_lshrrev_b32 v5, 4, v0', 'v_lshlrev_b32 v6, 5, v4', 'v_lshlrev_b32 v7, 4, v5', 'v_sub_u32 v6, v6, v7',
      f'v_add_u32 v6, {512+16-448-16}, v6', 'v_add_u32 v6, s61, v6')
    mf = lambda c, x, y, z=None: f'v_mfma_f32_16x16x32_bf16 {vr(c,4)}, {vr(x,4)}, {vr(y,4)}, {z or vr(c,4)}'
    acc = lambda c: CACC + 4 * c
    seq = []

    def cv(slot):
        d, z = ZD + 8 * slot, ZF + 4 * slot
        return [f'v_cvt_pk_bf16_f32 v{z+i}, v{d+2*i}, v{d+2*i+1}' for i in range(4)]
    for r in range(8):
        beta = r - 1
        stair = 0 <= beta <= 5
        extra = {}
        if stair:
            seq.append((16 + 448 + 512 * beta, lambda b: [mf(ZD, b, BOX, '0'), mf(ZD + 4, b, BOX + 4, '0'), mf(ZD + 8, b, BOX + 8, '0')]))
            seq.append((448 + 512 * beta, lambda b: [mf(ZD + 12, b, BOX + 12, '0')]))
            m2 = lambda pr, be=beta: [mf(acc(be + dl), ZF + 4 * pr, T2 + 4 * (2 * (dl - 2) + pr)) for dl in (2, 3, 4) if be + dl <= 7]
            extra[1] = cv(0)
            extra[2] = cv(1)
            extra[3] = m2(0) + m2(1)
        for jb in range(8):
            def f(b, r=r, jb=jb, ex=extra.get(jb, [])):
                o = [mf(acc(jb), AK + 4 * r, b)]
                if jb <= 6:
                    o.append(mf(acc(jb + 1), AK + 4 * (8 + r), b))
                if r == 0 and jb <= 5:
                    o.append(mf(acc(jb + 2), AK + 64, b))
                if r == 0 and jb <= 3:
                    o.append(mf(acc(jb + 4), FIX, b))
                return o + ex
            seq.append((16 + 448 + 512 * jb - 64 * r, f))
            if stair and beta <= 3 and jb == 3:
                seq.append((16 + 448 + 512 * beta, lambda b: [mf(ZD, b, BOX + 16, '0')]))
                seq.append((448 + 512 * beta, lambda b: [mf(ZD + 4, b, BOX + 20, '0')]))
                extra[6] = cv(0)
                extra[7] = [mf(acc(beta + dl), ZF, T3 + 4 * (dl - 4)) for dl in (4, 5, 6, 7) if beta + dl <= 7]
    PFD = 6
    for i in range(min(PFD, len(seq))):
        a(f'ds_read_b128 {vr(CB + 4*(i % 8), 4)}, v6 offset:{seq[i][0]}')
    for i, (off, fn) in enumerate(seq):
        if i + PFD < len(seq):
            a(f'ds_read_b128 {vr(CB + 4*((i+PFD) % 8), 4)}, v6 offset:{seq[i+PFD][0]}')
        a(fn(CB + 4 * (i % 8)))
    a('v_and_b32 v6, 1, v5', 'v_lshlrev_b32 v6, 9, v6', 'v_lshrrev_b32 v7, 2, v4', 'v_lshl_add_u32 v6, v7, 7, v6',
      'v_lshrrev_b32 v7, 1, v5', 'v_lshl_add_u32 v6, v7, 6, v6', 'v_and_b32 v7, 3, v4', 'v_lshl_add_u32 v6, v7, 4, v6',
      's_lshl_b32 s63, s62, 12', f's_add_u32 s63, s63, {WS_YT}')
    for p in range(4):
        o = CB + 4 * p
        c0, c1 = acc(2 * p), acc(2 * p + 1)
        a(f'v_cvt_pk_bf16_f32 v{o}, v{c0}, v{c0+1}', f'v_cvt_pk_bf16_f32 v{o+1}, v{c0+2}, v{c0+3}',
          f'v_cvt_pk_bf16_f32 v{o+2}, v{c1}, v{c1+1}', f'v_cvt_pk_bf16_f32 v{o+3}, v{c1+2}, v{c1+3}')
    for p in range(4):
        o = CB + 4 * p
        a(f'v_permlane16_swap_b32 v{o}, v{o+2}', f'v_permlane16_swap_b32 v{o+1}, v{o+3}',
          f'buffer_store_dwordx4 {vr(o,4)}, v6, s[{WS}:{WS+3}], s63 offen offset:{1024*p} {sc}')


def sprinkle(a, items, cuts):
    for i, t in enumerate(items):
        if i in cuts:
            cuts[i]()
        a(t)
    if len(items) in cuts:
        cuts[len(items)]()


def p1_ssm(a, tail, sc=''):
    WS = 48
    kgen_loads(a)
    srd(a, WS, sPWS, WS_SIZE)
    const_frags(a)
    pre, ch = kgen_body()
    a(pre)
    n = len(ch[0])
    a(ch[0])
    bar(a)
    ut_raw(a, 2)
    sprinkle(a, ch[1], {n // 2: lambda: bar(a)})
    bar(a)
    ut_finish(a, 2, WS, 160, sc)
    bar(a)
    sprinkle(a, ch[2], {n // 2: lambda: bar(a)})
    bar(a)
    tail(a)


def p1_pack(a, sc=''):
    WS, W2 = 48, 52
    a('s_waitcnt lgkmcnt(0)')
    srd(a, WS, sPWS, WS_SIZE)
    srd(a, W2, sPW2, 1966080)
    a('v_lshrrev_b32 v10, 3, v0', 'v_and_b32 v11, 7, v0', 'v_mul_u32_u24 v10, 1280, v10', 'v_lshl_add_u32 v10, v11, 4, v10',
      'v_lshrrev_b32 v11, 5, v0', 'v_lshlrev_b32 v11, 4, v11', 'v_bfe_u32 v12, v0, 4, 1', 'v_lshl_add_u32 v11, v12, 2, v11',
      'v_bfe_u32 v12, v0, 2, 2', 'v_add_u32 v11, v11, v12', 'v_lshlrev_b32 v11, 7, v11', 'v_and_b32 v12, 3, v0',
      'v_lshl_add_u32 v11, v12, 3, v11', 'v_add_u32 v11, s61, v11',
      'v_lshlrev_b32 v12, 4, v0',
      f's_lshl_b32 s66, s{sJ}, 4', f's_lshr_b32 s67, s{sT}, 1', 's_add_u32 s66, s66, s67', 's_lshl_b32 s66, s66, 2')
    bar(a)
    ut_raw(a, 1)
    bar(a)
    bar(a)
    ut_finish(a, 1, WS, 160, sc)
    a('s_waitcnt lgkmcnt(0)')
    for rnd in range(2):
        for i in range(2):
            a(f's_add_u32 s67, s66, {2*rnd+i}', 's_mul_i32 s68, s67, 6554', f's_lshr_b32 s{70+2*i}, s68, 16',
              f's_mul_i32 s68, s{70+2*i}, 10', f's_sub_u32 s{71+2*i}, s67, s68',
              f's_min_u32 s67, s{70+2*i}, 47', f's_mul_i32 s67, s67, {32*1280}', f's_lshl_b32 s68, s{71+2*i}, 7', 's_add_u32 s67, s67, s68',
              f's_add_u32 m0, s61, {4096*i}')
            for p in range(4):
                a(f'buffer_load_dwordx4 v10, s[{W2}:{W2+3}], s67 offen lds')
                if p < 3:
                    a('s_add_u32 m0, m0, 1024', f's_add_u32 s67, s67, {8*1280}')
        a('@markvm pk')
        bar(a)
        a('@waitvm pk')
        for i in range(2):
            for n in range(4):
                r = 32 + 16 * i + 4 * n
                a(f'ds_read_b64_tr_b16 {vr(r,2)}, v11 offset:{4096*i + 32*n}', f'ds_read_b64_tr_b16 {vr(r+2,2)}, v11 offset:{4096*i + 32*n + 1024}')
        for i in range(2):
            for n in range(4):
                r = 32 + 16 * i + 4 * n
                a(f's_lshl_b32 s67, s{71+2*i}, 2', f's_add_u32 s67, s67, {n}', 's_mul_i32 s68, s67, 52', 's_lshr_b32 s68, s68, 8',
                  's_mul_i32 s68, s68, 235', 's_add_u32 s67, s67, s68',
                  f's_mul_i32 s68, s{70+2*i}, 5', 's_add_u32 s67, s67, s68', 's_lshl_b32 s67, s67, 10', f's_add_u32 s67, s67, {WS_W2P}',
                  f's_cmp_ge_u32 s{70+2*i}, 48', f's_cselect_b32 s67, {WS_SIZE}, s67',
                  f'buffer_store_dwordx4 {vr(r,4)}, v12, s[{WS}:{WS+3}], s67 offen {sc}')
        bar(a)
    bar(a); bar(a)


def p2_gemm(a, sc=''):
    WS, X, O = 48, 52, 56
    FR = 112
    A2 = 32
    srd(a, WS, sPWS, WS_SIZE)
    srd(a, X, sPX, 2621440)
    srd(a, O, sPOUT, 2621440)
    a('v_lshlrev_b32 v2, 4, v0', 'v_add_u32 v3, 4096, v2',
      f's_mul_i32 s60, s{sT}, 48', f's_mul_i32 s61, s{sWAVE}, 12', 's_add_u32 s60, s60, s61',
      f's_mul_i32 s62, s{sJ}, 48', 's_add_u32 s62, s62, s61')
    steps = [(o, jp, jw) for o in range(3) for jp in range(2) for jw in range(2)]

    def loads(i):
        o, jp, jw = steps[i]
        r = FR + 36 * (i & 3)
        l = []
        if jp == 0 and jw == 0:
            l += [f's_add_u32 s63, s{sRS}, {o}', 's_cmp_ge_u32 s63, 3', 's_cselect_b32 s64, 3, 0', 's_sub_u32 s63, s63, s64', 's_lshl_b32 s63, s63, 1',
                  's_add_u32 s64, s63, s60', 's_lshl_b32 s64, s64, 12',
                  's_add_u32 s65, s63, s62', 's_mul_i32 s65, s65, 5120', f's_add_u32 s65, s65, {WS_W2P}']
        d = 6 * jp + jw
        l += [f's_add_u32 s66, s64, {d*4096}', f's_add_u32 s67, s65, {d*5120}']
        for n in range(5):
            l.append(f'buffer_load_dwordx4 {vr(r+16+4*n,4)}, v{2 + n//4}, s[{WS}:{WS+3}], s67 offen offset:{(n % 4)*1024} {sc}')
            if n < 4:
                l.append(f'buffer_load_dwordx4 {vr(r+4*n,4)}, v2, s[{WS}:{WS+3}], s66 offen offset:{n*1024} {sc}')
        return l
    for i in range(3):
        a(loads(i))
    XV = 16
    fin = Stream()
    fin(f's_lshl_b32 s68, s{sWAVE}, 6', 'v_add_u32 v4, s68, v0',
        f's_mul_i32 s69, s{sT}, {64*1280}', f's_mul_i32 s68, s{sJ}, 160', 's_add_u32 s69, s69, s68')
    for m in range(3):
        fin(f'v_add_u32 v5, {256*m}, v4', 'v_mul_u32_u24 v6, 6554, v5', 'v_lshrrev_b32 v6, 16, v6',
            'v_mul_u32_u24 v28, 10, v6', 'v_sub_u32 v28, v5, v28',
            f'v_mul_u32_u24 v{7+m}, 1280, v6', f'v_lshl_add_u32 v{7+m}, v28, 4, v{7+m}',
            f'v_mul_u32_u24 v{10+m}, {P_STR}, v6', f'v_lshl_add_u32 v{10+m}, v28, 5, v{10+m}',
            f'v_mul_u32_u24 v{13+m}, 176, v6', f'v_lshl_add_u32 v{13+m}, v28, 4, v{13+m}', f'v_add_u32 v{13+m}, {L_YR}, v{13+m}')
        if m == 2:
            fin('v_cmp_gt_u32 vcc, 640, v5', 'v_mov_b32 v28, 0x7ffffff0', 'v_cndmask_b32 v9, v28, v9, vcc',
                'v_cndmask_b32 v12, 0, v12, vcc', 'v_cndmask_b32 v15, 0, v15, vcc')
        fin(f'buffer_load_dwordx4 {vr(XV+4*m,4)}, v{7+m}, s[{X}:{X+3}], s69 offen')
    fin('v_and_b32 v5, 15, v0', f'v_mul_u32_u24 v5, {P_STR}, v5', 'v_lshrrev_b32 v6, 4, v0', 'v_lshl_add_u32 v5, v6, 4, v5',
        f's_mul_i32 s68, s{sWAVE}, {P_SZ}', 'v_add_u32 v4, s68, v5')
    for i in range(12):
        r = FR + 36 * (i & 3)
        m = []
        for tg in range(4):
            for n in range(5):
                c = A2 + 4 * (5 * tg + n)
                m.append(f'v_mfma_f32_16x16x32_bf16 {vr(c,4)}, {vr(r+16+4*n,4)}, {vr(r+4*tg,4)}, {"0" if i == 0 else vr(c,4)}')
        if i + 3 < 12:
            a(loads(i + 3))
        if i == 9:
            m = interleave(m, fin.items)
        a(m)
    for tg in range(4):
        for n in range(5):
            c = A2 + 4 * (5 * tg + n)
            a(f'ds_write_b128 v4, {vr(c,4)} offset:{16*tg*P_STR + 64*n}')
    a('s_waitcnt lgkmcnt(0)')
    bar(a)
    for m in range(3):
        R = 32 + 36 * m
        for w in range(4):
            hi = 0
            a(f'ds_read_b128 {vr(R+8*w,4)}, v{10+m} offset:{w*P_SZ}', f'ds_read_b128 {vr(R+8*w+4,4)}, v{10+m} offset:{w*P_SZ+16}')
        a(f'ds_read_b128 {vr(R+32,4)}, v{13+m}')
    for m in range(3):
        R = 32 + 36 * m
        for d in range(4):
            p = lambda w: vr(R + 8 * w + 2 * d, 2)
            a(f'v_pk_add_f32 {p(0)}, {p(0)}, {p(1)}', f'v_pk_add_f32 {p(2)}, {p(2)}, {p(3)}',
              f'v_lshlrev_b32 v28, 16, v{XV+4*m+d}', f'v_and_b32 v29, 0xffff0000, v{XV+4*m+d}',
              f'v_lshlrev_b32 v30, 16, v{R+32+d}', f'v_and_b32 v31, 0xffff0000, v{R+32+d}',
              f'v_pk_add_f32 {p(0)}, {p(0)}, {p(2)}', 'v_pk_add_f32 v[28:29], v[28:29], v[30:31]',
              f'v_pk_add_f32 {p(0)}, {p(0)}, v[28:29]',
              f'v_cvt_pk_bf16_f32 v{R+32+d}, v{R+2*d}, v{R+2*d+1}')
        a(f'buffer_store_dwordx4 {vr(R+32,4)}, v{7+m}, s[{O}:{O+3}], s69 offen')


def p2_ystage(a, sc=''):
    WS = 48
    srd(a, WS, sPWS, WS_SIZE)
    a('v_lshrrev_b32 v2, 3, v0', 'v_and_b32 v3, 7, v0', 'v_lshlrev_b32 v3, 4, v3',
      'v_lshl_add_u32 v4, v2, 12, v3',
      'v_mul_u32_u24 v5, 144, v2', 'v_add_u32 v5, v5, v3', f'v_add_u32 v5, {L_YC}, v5',
      f's_mul_i32 s60, s{sJ}, {80*4096}', f's_lshl_b32 s61, s{sT}, 7', 's_add_u32 s60, s60, s61', f's_add_u32 s60, s60, {WS_YT}')
    for i in range(10):
        a(f'buffer_load_dwordx4 {vr(16+4*i,4)}, v4, s[{WS}:{WS+3}], s60 offen {sc}')
        if i < 9:
            a('s_add_u32 s60, s60, 32768')
    a('v_lshrrev_b32 v6, 2, v0', 'v_mul_u32_u24 v6, 144, v6', 'v_bfe_u32 v7, v0, 1, 1', 'v_lshl_add_u32 v6, v7, 6, v6',
      'v_and_b32 v7, 1, v0', 'v_lshl_add_u32 v6, v7, 3, v6', f'v_add_u32 v6, {L_YC}, v6',
      'v_and_b32 v7, 15, v0', 'v_mul_u32_u24 v7, 176, v7', 'v_lshrrev_b32 v8, 4, v0', 'v_lshl_add_u32 v7, v8, 3, v7', f'v_add_u32 v7, {L_YR}, v7')
    for i in range(10):
        a(f'ds_write_b128 v5, {vr(16+4*i,4)} offset:{8*144*i}')
    for n in range(5):
        for tg in range(4):
            a(f'ds_read_b64_tr_b16 {vr(64 + 2*(4*n+tg), 2)}, v6 offset:{16*144*n + 16*tg}')
    for n in range(5):
        for tg in range(4):
            a(f'ds_write_b64 v7, {vr(64 + 2*(4*n+tg), 2)} offset:{16*176*tg + 32*n}')
    a('s_waitcnt lgkmcnt(0)')
    bar(a)


def kd(name, vgpr=256, sgpr=102):
    return f'''.amdhsa_kernel {name}
  .amdhsa_next_free_vgpr {vgpr}
  .amdhsa_next_free_sgpr {sgpr}
  .amdhsa_accum_offset {(vgpr+3)//4*4}
  .amdhsa_group_segment_fixed_size 0
  .amdhsa_kernarg_size 120
  .amdhsa_user_sgpr_count 2
  .amdhsa_user_sgpr_kernarg_segment_ptr 1
  .amdhsa_system_sgpr_workgroup_id_x 1
.end_amdhsa_kernel
'''


def khead(name):
    return f'.globl {name}\n.p2align 8\n.type {name},@function\n{name}:\n'


def role(name, fn, stats):
    s = Stream(name)
    s(f'{name}:')
    fn(s)
    s('s_endpgm')
    return '.p2align 6\n' + s.render(stats)


def build3():
    st = {}
    o = ''
    p = Stream('A_pro'); prologue(p, 'A_end')
    p(f's_cmp_lt_u32 s{sWAVE}, 4', 's_cbranch_scc1 A_g', f's_cmp_eq_u32 s{sWAVE}, 7', 's_cbranch_scc1 A_l')
    s_setup(p)
    p(f's_and_b32 s63, s{sT}, 1', 's_add_u32 s63, s63, s60', 's_cmp_eq_u32 s63, 3', 's_cbranch_scc1 A_p', 's_branch A_s', 'A_end:', 's_endpgm')
    o += khead('ka_kernel') + p.render(st)

    def tailA(a):
        a('v_lshlrev_b32 v2, 2, v0', 's_mul_i32 s63, s62, 2816', f's_add_u32 s63, s63, {WS_KC}')
        for e in range(11):
            a(f'buffer_store_dword v{KD+e}, v2, s[48:51], s63 offen offset:{256*e}')
        bar(a); bar(a); bar(a)
    o += role('A_l', p1_loader, st) + role('A_g', p1_gemm, st) + role('A_s', lambda a: p1_ssm(a, tailA), st) + role('A_p', p1_pack, st)
    p = Stream('B'); prologue(p, 'B_end')
    p(f's_add_u32 s{sWAVE}, s{sWAVE}, 4')
    s_setup(p)
    p(f's_and_b32 s63, s{sT}, 1', 's_add_u32 s63, s63, s60', 's_cmp_eq_u32 s63, 3', 's_cbranch_scc1 B_end')
    p('s_lshr_b32 s66, s62, 1', 's_lshl_b32 s66, s66, 2', 's_waitcnt lgkmcnt(0)')
    p(f's_load_dword s68, s[{sPD}:{sPD+1}], s66', f's_load_dword s69, s[{sPB2}:{sPB2+1}], s66')
    srd(p, 48, sPWS, WS_SIZE)
    p('v_lshlrev_b32 v2, 2, v0', 's_mul_i32 s63, s62, 2816', f's_add_u32 s63, s63, {WS_KC}')
    for e in range(11):
        p(f'buffer_load_dword v{KD+e}, v2, s[48:51], s63 offen offset:{256*e}')
    conv_load_u(p, 48)
    const_frags(p)
    scal_bf16(p, 68, 62); scal_bf16(p, 69, 62)
    build_frags(p)
    p('v_lshlrev_b32 v2, 4, v0')
    conv_body(p, 48)
    p('B_end:', 's_endpgm')
    o += khead('kb_kernel') + p.render(st)
    p = Stream('C_pro'); prologue(p, 'C_end')
    p('s_waitcnt lgkmcnt(0)', f's_cmp_lt_u32 s{sWAVE}, 4', 's_cbranch_scc1 C_g', 's_branch C_y', 'C_end:', 's_endpgm')
    o += khead('kc_kernel') + p.render(st)
    o += role('C_g', p2_gemm, st) + role('C_y', p2_ystage, st)
    hdr = ('; @launch kernel=ka_kernel grid=(256,1,1) block=(512,1,1) lds=163840\n'
           '; @launch kernel=kb_kernel grid=(256,1,1) block=(192,1,1) lds=163840\n'
           '; @launch kernel=kc_kernel grid=(256,1,1) block=(320,1,1) lds=163840\n'
           '.amdgcn_target "amdgcn-amd-amdhsa--gfx950"\n.text\n')
    tail = '.section .rodata,"a"\n' + ''.join('.p2align 6\n' + kd(k) for k in ('ka_kernel', 'kb_kernel', 'kc_kernel'))
    for k, v in st.items():
        print(k, v, file=sys.stderr)
    return hdr + o + tail


if __name__ == '__main__':
    out = sys.argv[1] if len(sys.argv) > 1 else f'cdna_kernels/{NAME}.s'
    open(out, 'w').write(build3())
```

```python
import re

TRANS = ('v_exp_f32', 'v_log_f32', 'v_rcp_f32', 'v_rsq_f32', 'v_sqrt_f32', 'v_sin_f32', 'v_cos_f32')
_reg_re = re.compile(r'^(-|\|)?(abs\()?([vsa])(\d+|\[(\d+):(\d+)\])')


def regs_of(opnd):
    o = opnd.strip()
    if o in ('vcc', 'vcc_lo', 'vcc_hi'):
        return {('s', 'vcc')}
    if o == 'm0':
        return {('s', 'm0')}
    if o in ('exec', 'exec_lo', 'exec_hi'):
        return {('s', 'exec')}
    m = _reg_re.match(o)
    if not m:
        return set()
    k = m.group(3)
    if m.group(5) is not None:
        return {(k, i) for i in range(int(m.group(5)), int(m.group(6)) + 1)}
    return {(k, int(m.group(4)))}


def split_ops(rest):
    out, depth, cur = [], 0, ''
    for ch in rest:
        if ch in '[(':
            depth += 1
        if ch in '])':
            depth -= 1
        if ch == ',' and depth == 0:
            out.append(cur.strip()); cur = ''
        else:
            cur += ch
    if cur.strip():
        out.append(cur.strip())
    if out:
        parts = out[-1].split()
        out[-1] = parts[0]
        mods = parts[1:]
    else:
        mods = []
    return out, mods


class I:
    __slots__ = ('text', 'op', 'kind', 'dst', 'src', 'ops', 'mods', 'passes', 'A', 'B', 'C', 'wide', 'data')

    def __init__(self, text):
        self.text = text
        t = text.split(';')[0].strip()
        self.dst, self.src = set(), set()
        self.passes = 0
        self.wide = False
        self.data = set()
        if t.endswith(':') or t.startswith('.') or not t:
            self.op, self.kind, self.ops, self.mods = t, 'label', [], []
            return
        sp = t.split(None, 1)
        op = sp[0]
        ops, mods = split_ops(sp[1]) if len(sp) > 1 else ([], [])
        self.op, self.ops, self.mods = op, ops, mods
        R = [regs_of(o) for o in ops]
        U = lambda l: set().union(*l) if l else set()
        if op.startswith('v_mfma'):
            self.kind = 'mfma'
            self.passes = 8 if '32x32' in op else 4
            self.dst = R[0]; self.A, self.B, self.C = R[1], R[2], R[3]
            self.src = R[1] | R[2] | R[3]
        elif op.startswith('v_'):
            self.kind = 'valu'
            if op.startswith('v_pk_') and op.endswith('f32'):
                m = re.search(r'op_sel:\[([01,]+)\]', t)
                if m:
                    sel = [int(x) for x, o in zip(m.group(1).split(','), ops[1:]) if o.startswith('v')]
                    assert sel[:2] != [0, 1], 'unsafe op_sel: ' + text
            if op.startswith('v_permlane'):
                self.dst = R[0] | R[1]; self.src = R[0] | R[1]
            elif op.startswith('v_nop'):
                pass
            else:
                self.dst = R[0]; self.src = U(R[1:])
                if op.startswith(('v_fmac', 'v_dot2c', 'v_writelane')):
                    self.src |= R[0]
                if op.startswith('v_cndmask') and len(ops) == 3:
                    self.src |= {('s', 'vcc')}
                if op.startswith(('v_add_co', 'v_sub_co', 'v_addc_co')):
                    self.dst |= R[1]
                if '_dpp' in op:
                    self.src |= R[0]
        elif op.startswith('ds_'):
            self.kind = 'ds'
            if op.startswith(('ds_read', 'ds_bpermute', 'ds_permute', 'ds_swizzle')) or '_rtn' in op:
                self.dst = R[0]; self.src = U(R[1:])
            else:
                self.src = U(R)
        elif op.startswith(('buffer_', 'global_')):
            self.kind = 'vmem'
            if 'lds' in mods:
                self.src = U(R) | {('s', 'm0')}
            elif '_load' in op:
                self.dst = R[0]; self.src = U(R[1:])
            elif op in ('buffer_wbl2', 'buffer_inv'):
                pass
            else:
                self.src = U(R)
                if 'x4' in op or 'x3' in op:
                    self.wide = True
                    self.data = R[0] if op.startswith('buffer_') else R[1]
                if 'atomic' in op and 'sc0' in mods:
                    self.dst = R[0]
        elif op.startswith(('s_load', 's_buffer_load', 's_memtime', 's_memrealtime')):
            self.kind = 'smem'
            self.dst = R[0]; self.src = U(R[1:])
        elif op.startswith('s_'):
            self.kind = 'salu'
            if op.startswith(('s_cmp', 's_bitcmp')):
                self.src = U(R)
            elif op in ('s_waitcnt', 's_nop', 's_barrier', 's_setprio', 's_sleep', 's_endpgm', 's_branch') or op.startswith('s_cbranch'):
                self.kind = 'ctl'
                if 'vcc' in op:
                    self.src = {('s', 'vcc')}
            else:
                self.dst = R[0]; self.src = U(R[1:])
                if op.startswith(('s_addk', 's_mulk')):
                    self.src |= R[0]
                if 'saveexec' in op:
                    self.dst |= {('s', 'exec')}
        else:
            raise ValueError('unknown op ' + text)


def need_states(p, c):
    n = 0
    pv = {r for r in p.dst if r[0] in 'va'}
    ps = {r for r in p.dst if r[0] == 's'}
    if p.kind == 'valu':
        isdot = p.op.startswith('v_dot')
        if c.kind == 'mfma' and pv & c.src:
            n = max(n, 3 if isdot else 2)
        if c.kind == 'valu':
            if isdot and pv & (c.src | c.dst):
                same = c.op == p.op
                if same:
                    ab = set().union(*[regs_of(o) for o in (c.ops[1:3])])
                    if pv & ab:
                        n = max(n, 3)
                else:
                    n = max(n, 3)
            if p.op.startswith(TRANS) and pv & c.src:
                n = max(n, 1)
            if (c.op.startswith('v_permlane') or '_dpp' in c.op) and pv & c.src:
                n = max(n, 2)
            if c.op.startswith(('v_readlane', 'v_readfirstlane')) and pv & c.src:
                n = max(n, 1)
            if ps & c.src:
                n = max(n, 4 if c.op.startswith(('v_readlane', 'v_writelane')) else 2)
        if c.kind in ('ds', 'vmem') and isdot and pv & c.src:
            n = max(n, 3)
        if c.kind in ('ds', 'vmem') and p.op.startswith(TRANS) and pv & c.src:
            n = max(n, 1)
        if c.kind == 'vmem' and ps & c.src:
            n = max(n, 5)
        if c.kind in ('salu', 'smem', 'ctl') and ps & c.src:
            n = max(n, 2)
    elif p.kind == 'mfma':
        big = 12 if p.passes == 8 else 8
        if c.kind == 'mfma':
            if p.dst & (c.A | c.B):
                n = max(n, big)
            if p.dst & c.C:
                if not (p.dst == c.C and p.passes == c.passes):
                    n = max(n, big - 2)
            elif p.dst & c.dst:
                n = max(n, big - 2)
        elif c.kind in ('valu', 'ds', 'vmem'):
            if p.dst & (c.src | c.dst):
                n = max(n, big)
            if c.kind == 'valu' and p.C & c.dst:
                n = max(n, p.passes - 1)
    elif p.kind == 'salu':
        if ('s', 'm0') in p.dst and ('s', 'm0') in c.src and c.kind in ('vmem', 'ds'):
            n = max(n, 1)
    elif p.kind == 'vmem':
        if p.wide and p.data & c.dst:
            n = max(n, 2 if c.kind in ('valu', 'mfma') else 1)
    return n


class Stream:
    diag = False

    def __init__(self, name=''):
        self.name = name
        self.items = []

    def emit(self, *lines):
        for l in lines:
            if isinstance(l, (list, tuple)):
                self.emit(*l)
            else:
                for x in l.split('\n'):
                    if x.strip():
                        self.items.append(x.strip())

    __call__ = emit

    def render(self, stats=None):
        out = []
        lg, vm = [], []
        marks = {}
        nnop = nwait = 0

        def add(text):
            out.append(I(text))

        for text in self.items:
            if text.startswith('@'):
                a = text.split()
                if a[0] == '@markvm':
                    marks[a[1]] = vm[-1] if vm else None
                elif a[0] == '@waitvm':
                    t = marks[a[1]]
                    if t is not None and any(t is x for x in vm):
                        k = [i for i, x in enumerate(vm) if x is t][0]
                        n = len(vm) - 1 - k
                        assert n <= 63, (self.name, text, n)
                        add(f's_waitcnt vmcnt({n})'); vm = vm[k + 1:]; nwait += 1
                elif a[0] == '@stamp':
                    if Stream.diag:
                        k = 80 + 2 * int(a[1])
                        x = I(f's_mem{"real" if len(a) > 2 else ""}time s[{k}:{k+1}]'); x.kind = 'ctl'; x.dst = set(); out.append(x)
                elif a[0] == '@reset':
                    lg, vm = [], []
                else:
                    raise ValueError(text)
                continue
            ins = I(text)
            if ins.kind == 'label':
                out.append(ins); continue
            if ins.op == 's_waitcnt':
                m = re.search(r'vmcnt\((\d+)\)', text)
                if m:
                    n = int(m.group(1)); vm = vm[len(vm) - n:] if n < len(vm) and n > 0 else ([] if n == 0 else vm)
                m = re.search(r'lgkmcnt\((\d+)\)', text)
                if m:
                    n = int(m.group(1))
                    if n == 0:
                        lg = []
                    elif n < len(lg) and not any(x.kind == 'smem' for x in lg):
                        lg = lg[len(lg) - n:]
                out.append(ins); continue
            touch = ins.src | ins.dst
            w = []
            k = max([i for i, x in enumerate(vm) if x.dst & touch], default=-1)
            if k >= 0:
                n = min(len(vm) - 1 - k, 63)
                w.append(f'vmcnt({n})'); vm = vm[len(vm) - n:] if n else []
            k = max([i for i, x in enumerate(lg) if x.dst & touch], default=-1)
            if k >= 0:
                if any(x.kind == 'smem' for x in lg):
                    n = 0
                else:
                    n = min(len(lg) - 1 - k, 15)
                w.append(f'lgkmcnt({n})'); lg = lg[len(lg) - n:] if n else []
            if w:
                add('s_waitcnt ' + ' '.join(w)); nwait += 1
            need, dist = 0, 0
            for p in reversed(out):
                if p.kind == 'label':
                    continue
                r = need_states(p, ins) - dist
                need = max(need, r)
                dist += (int(p.ops[0], 0) + 1) if p.op == 's_nop' else 1
                if dist >= 12:
                    break
            if need > 0:
                add(f's_nop {need - 1}'); nnop += 1
            out.append(ins)
            if ins.kind == 'vmem':
                vm.append(ins)
            elif ins.kind in ('ds', 'smem'):
                lg.append(ins)
        if stats is not None:
            cnt = {}
            for x in out:
                cnt[x.kind] = cnt.get(x.kind, 0) + 1
            stats[self.name] = dict(cnt, nops=nnop, waits=nwait)
        return '\n'.join(('' if x.kind == 'label' else '  ') + x.text for x in out) + '\n'


def interleave(main, fill, start=0, end=None, is_slot=None):
    is_slot = is_slot or (lambda t: t.startswith('v_mfma'))
    slots = [i for i, t in enumerate(main) if is_slot(t)]
    slots = slots[start:end]
    out, k = [], 0
    n = len(slots)
    pos = {s: idx for idx, s in enumerate(slots)}
    for i, t in enumerate(main):
        out.append(t)
        if i in pos:
            tgt = (pos[i] + 1) * len(fill) // n
            while k < tgt:
                out.append(fill[k]); k += 1
    out += fill[k:]
    return out


def vr(a, n=1):
    return f'v{a}' if n == 1 else f'v[{a}:{a + n - 1}]'


def sr(a, n=1):
    return f's{a}' if n == 1 else f's[{a}:{a + n - 1}]'


def f2h(x):
    import struct
    return '0x%08x' % struct.unpack('<I', struct.pack('<f', x))[0]
```

```python
import sys, math
from asmlib import *

NAME = 'parallel_sum__ssm_conv_s4d__mixer_channel_mlp__prompt'
LOG2E = 1.4426950408889634

WS_HP = 0x0
WS_W2P = 0x600000
WS_UT = 0x800000
WS_YT = 0xB00000
WS_KC = 0xE00000
WS_FL = 0x1000000
WS_SIZE = 0x1010000

SLOT = 40960
L_S = 3 * SLOT
S_SZ = 9216
L_PART = L_S + 3 * S_SZ
L_CS = L_PART + 1024
L_B1 = L_CS + 1024
L_END = L_B1 + 1024
P_STR = 336
P_SZ = 64 * P_STR
L_YC = 4 * P_SZ
L_YR = L_YC + 80 * 144
assert L_YR + 64 * 176 <= L_S

sWAVE, sT, sJ, sRS = 3, 4, 5, 6
sPX, sPLA, sPAI, sPCR, sPCI, sPDT, sPD = 16, 18, 20, 22, 24, 26, 28
sPW1, sPB1, sPW2, sPB2, sPOUT, sPDBG, sPWS = 32, 34, 36, 38, 40, 42, 44


def srd(a, d, ptr, size):
    a(f's_mov_b32 s{d}, s{ptr}', f's_and_b32 s{d+1}, s{ptr+1}, 0xffff',
      f's_mov_b32 s{d+2}, {size}', f's_mov_b32 s{d+3}, 0x20000')


def diag_end(a, kidx):
    if not Stream.diag:
        return
    a('s_waitcnt vmcnt(0)', '@stamp 9', '@stamp 10 r', 's_waitcnt lgkmcnt(0)')
    for i in range(11):
        a(f'v_mov_b32 v{4+i}, s{80+2*i}')
    a('v_mov_b32 v15, s14')
    a(f's_lshl_b32 s63, s2, 9', f's_lshl_b32 s64, s{sWAVE}, 6', 's_add_u32 s63, s63, s64', f's_add_u32 s63, s63, {0x2000000 + kidx*0x20000}',
      f's_add_u32 s64, s{sPWS}, s63', f's_addc_u32 s65, s{sPWS+1}, 0', 'v_mov_b32 v2, 0')
    for i in range(3):
        a(f'global_store_dwordx4 v2, {vr(4+4*i,4)}, s[64:65] offset:{16*i}')


def prologue(a, endlabel):
    if Stream.diag:
        a('s_memrealtime s[14:15]')
    a('@stamp 0')
    a('s_load_dwordx16 s[16:31], s[0:1], 0',
      's_load_dwordx8 s[32:39], s[0:1], 64',
      's_load_dwordx4 s[40:43], s[0:1], 96',
      's_load_dwordx2 s[44:45], s[0:1], 112',
      's_cmp_ge_u32 s2, 256',
      f's_cbranch_scc1 {endlabel}',
      'v_lshrrev_b32 v1, 6, v0',
      'v_and_b32 v0, 63, v0',
      's_and_b32 s7, s2, 7',
      f'v_readfirstlane_b32 s{sWAVE}, v1',
      's_lshr_b32 s8, s2, 3',
      's_lshr_b32 s9, s7, 1',
      's_lshl_b32 s9, s9, 3',
      's_and_b32 s10, s8, 7',
      f's_add_u32 s{sT}, s9, s10',
      's_and_b32 s9, s7, 1',
      's_lshl_b32 s9, s9, 2',
      's_lshr_b32 s10, s8, 3',
      f's_add_u32 s{sJ}, s9, s10',
      f's_mul_i32 s9, s{sT}, 43',
      's_lshr_b32 s9, s9, 7',
      's_mul_i32 s10, s9, 3',
      f's_sub_u32 s{sRS}, s{sT}, s10')


def bar(a):
    a('s_barrier')


def p1_loader(a):
    X, W = 48, 52
    a('s_waitcnt lgkmcnt(0)')
    srd(a, X, sPX, 2621440)
    srd(a, W, sPW1, 1966080)
    a('v_lshrrev_b32 v1, 3, v0',
      'v_and_b32 v2, 7, v0',
      'v_lshrrev_b32 v3, 1, v1',
      'v_xor_b32 v4, v2, v3',
      'v_xor_b32 v5, 4, v4',
      'v_mul_u32_u24 v6, 1280, v1',
      'v_lshl_add_u32 v4, v4, 4, v6',
      'v_lshl_add_u32 v5, v5, 4, v6',
      'v_and_b32 v3, 1, v3',
      'v_lshlrev_b32 v3, 2, v3',
      'v_xor_b32 v3, v2, v3',
      'v_mul_u32_u24 v6, 3072, v1',
      'v_lshl_add_u32 v6, v3, 4, v6')
    a(f's_lshr_b32 s60, s{sJ}, 2',
      f's_and_b32 s61, s{sJ}, 3',
      's_lshl_b32 s61, s61, 1',
      f's_mul_i32 s62, s{sT}, {64*1280}',
      f's_mul_i32 s63, s{sJ}, 384',
      's_and_b32 s64, s9, 3')

    def xstage(st):
        a(f's_xor_b32 s65, s60, {st}', 's_mul_i32 s65, s65, 640', 's_add_u32 s65, s65, s62')
        for pp in range(8):
            a(f's_add_u32 s66, s61, {pp}', 's_and_b32 s66, s66, 7',
              f's_mul_i32 s67, s66, {8*1280}', 's_add_u32 s67, s67, s65',
              's_lshl_b32 s66, s66, 10', f's_add_u32 m0, s66, {st*SLOT}')
            for q in range(5):
                a(f'buffer_load_dwordx4 v{4 + (pp & 1)}, s[{X}:{X+3}], s67 offen offset:{q*128} lds')
                if q < 4:
                    a(f's_add_u32 m0, m0, {8192-128}')
        a(f'@markvm st{st}')

    def wstage(st):
        sg = st - 2
        slot = (st % 3) * SLOT
        a(f's_add_u32 s65, s{sRS}, {sg//2}', 's_cmp_ge_u32 s65, 3', 's_cselect_b32 s66, 3, 0', 's_sub_u32 s65, s65, s66',
          's_lshl_b32 s65, s65, 7', 's_add_u32 s65, s65, s63',
          f's_xor_b32 s66, s60, {sg & 1}', f's_mul_i32 s66, s66, {320*3072}', 's_add_u32 s65, s65, s66')
        for g in range(5):
            a(f's_add_u32 s66, s64, {g}', 's_cmp_ge_u32 s66, 5', 's_cselect_b32 s67, 5, 0', 's_sub_u32 s66, s66, s67',
              f's_mul_i32 s67, s66, {64*3072}', 's_add_u32 s67, s67, s65',
              's_lshl_b32 s66, s66, 13', f's_add_u32 m0, s66, {slot}')
            for i in range(8):
                a(f'buffer_load_dwordx4 v6, s[{W}:{W+3}], s67 offen lds')
                if i < 7:
                    a('s_add_u32 m0, m0, 1024', f's_add_u32 s67, s67, {8*3072}')
        a(f'@markvm st{st}')

    xstage(0); xstage(1)
    for k in range(8):
        a(f'@waitvm st{k}')
        a(f'@stamp {k+1}')
        bar(a)
        if k + 2 < 8:
            wstage(k + 2)
    bar(a)


def rbf(a, v):
    a(f'v_cvt_pk_bf16_f32 v{v}, v{v}, v{v}', f'v_and_b32 v{v}, 0xffff0000, v{v}')


def ln_math(a, vs, vq, t, o, full):
    mu, var, m, d = t, t + 1, t + 2, t + 3
    a(f'v_mul_f32 v{mu}, {f2h(1/640)}, v{vs}',
      f'v_mul_f32 v{var}, {f2h(1/640)}, v{vq}',
      f'v_fma_f32 v{var}, -v{mu}, v{mu}, v{var}',
      f'v_max_f32 v{var}, 0, v{var}',
      f'v_mov_b32 v{m}, v{mu}')
    rbf(a, m)
    a(f'v_mov_b32 v{d}, v{var}')
    rbf(a, d)
    a(f'v_add_f32 v{d}, {f2h(1e-5)}, v{d}')
    rbf(a, d)
    a(f'v_sqrt_f32 v{d}, v{d}')
    rbf(a, d)
    a(f'v_rcp_f32 v{o}, v{d}',
      f'v_mul_f32 v{o+1}, v{m}, v{o}')
    if not full:
        a(f'v_sub_f32 v{o+1}, 0, v{o+1}')
        return
    a(f'v_sub_f32 v{mu}, v{mu}, v{m}',
      f'v_mul_f32 v{mu}, v{mu}, v{o}',
      f'v_mul_f32 v{var}, v{var}, v{o}',
      f'v_mul_f32 v{var}, v{var}, v{o}')
    rbf(a, mu)
    rbf(a, var)
    a(f'v_add_f32 v{var}, {f2h(1e-5)}, v{var}')
    rbf(a, var)
    a(f'v_sqrt_f32 v{var}, v{var}')
    rbf(a, var)
    a(f'v_rcp_f32 v{var}, v{var}',
      f'v_add_f32 v{mu}, v{mu}, v{o+1}',
      f'v_mul_f32 v{o+2}, v{o}, v{var}',
      f'v_mul_f32 v{o+3}, v{mu}, v{var}',
      f'v_sub_f32 v{o+3}, 0, v{o+3}')


def p1_gemm(a, sc=''):
    WS, B1 = 48, 52
    XR = 96
    ACC = [64, 80]
    WF = 48
    CSA = 44
    SEL = 40
    vXA = 4
    vWA = 8
    vHO = 10
    vEA = 11
    vSS = 14
    vCA = 3
    TMP = 16
    a(f's_lshr_b32 s60, s{sWAVE}, 1',
      f's_and_b32 s61, s{sWAVE}, 1',
      's_xor_b32 s62, s60, s61')
    a('v_and_b32 v1, 31, v0', 'v_lshrrev_b32 v2, 5, v0',
      's_lshl_b32 s63, s60, 12',
      'v_lshlrev_b32 v16, 7, v1', 'v_add_u32 v16, s63, v16',
      'v_bfe_u32 v17, v1, 1, 3')
    for m in range(4):
        a(f's_lshl_b32 s63, s62, 2', f's_xor_b32 s63, s63, {2*m}',
          f's_mul_i32 s64, s62, {(2 if m < 2 else 3)*8192}',
          'v_add_u32 v18, s63, v2', 'v_xor_b32 v18, v18, v17',
          'v_lshl_add_u32 v18, v18, 4, v16', f'v_add_u32 v{vXA+m}, s64, v18')
    a(f's_mul_i32 s65, s62, {5*8192}',
      f's_sub_u32 s73, {3*8192}, s65', f's_sub_u32 s74, {2*8192}, s65',
      f's_sub_u32 s75, {SLOT}, s73', f's_sub_u32 s76, {SLOT}, s74')
    a('v_bfe_u32 v16, v0, 2, 2',
      'v_lshl_add_u32 v17, v2, 3, v16',
      'v_lshlrev_b32 v17, 7, v17',
      'v_lshrrev_b32 v16, 1, v16',
      'v_xor_b32 v16, s61, v16',
      'v_lshl_add_u32 v17, v16, 6, v17',
      'v_bfe_u32 v16, v0, 4, 1',
      'v_lshl_add_u32 v17, v16, 5, v17',
      'v_and_b32 v16, 3, v0',
      'v_lshl_add_u32 v17, v16, 3, v17',
      f's_mul_i32 s63, s62, {10*2048}',
      f's_add_u32 s64, s63, {2*SLOT}',
      f'v_add_u32 v{vWA}, s64, v17',
      f's_sub_u32 s64, {2*SLOT + 10*2048}, s63',
      f'v_add_u32 v{vWA+1}, s64, v17')
    a('v_bfe_u32 v16, v0, 4, 1', 'v_lshlrev_b32 v16, 10, v16',
      'v_lshl_add_u32 v16, v2, 8, v16',
      'v_and_b32 v17, 15, v0', 'v_lshl_add_u32 v16, v17, 4, v16',
      's_lshl_b32 s63, s60, 11', f'v_add_u32 v{vHO}, s63, v16')
    a('v_bfe_u32 v16, v0, 4, 1', 'v_cmp_eq_u32 vcc, v16, v17', 'v_mov_b32 v18, 0x3f803f80',
      f'v_cndmask_b32 v{SEL}, 0, v18, vcc')
    a(*[f'v_mov_b32 v{SEL+i}, v{SEL}' for i in (1, 2, 3)])
    a('s_waitcnt lgkmcnt(0)')
    srd(a, WS, sPWS, WS_SIZE)
    srd(a, B1, sPB1, 3072)
    a(f's_mul_i32 s63, s{sJ}, 384', f's_lshl_b32 s64, s{sWAVE}, 7', 's_add_u32 s63, s63, s64',
      'v_lshlrev_b32 v16, 1, v0', 'v_mov_b32 v18, 0', 'v_mov_b32 v19, 0',
      f'buffer_load_short_d16_hi v18, v16, s[{B1}:{B1+3}], s63 offen',
      f's_lshl_b32 s64, s{sWAVE}, 8', f's_add_u32 s64, s64, {L_CS}', 'v_lshlrev_b32 v16, 2, v0', 'v_add_u32 v16, s64, v16',
      'ds_write_b32 v16, v19',
      f'ds_write_b32 v16, v18 offset:{L_B1-L_CS}')
    a(f's_mov_b32 s70, {f2h(-2*LOG2E*0.7978845608028654*0.044715)}', f's_mov_b32 s71, {f2h(-2*LOG2E*0.7978845608028654)}',
      's_mov_b32 s72, 0x3f803f80')
    S0, Q0 = 20, 22
    a(*[f'v_mov_b32 v{r}, 0' for r in range(20, 24)])
    a('s_waitcnt lgkmcnt(0)')
    for st in range(2):
        bar(a)
        a(f'@stamp {1+st}')
        for u in range(20):
            if u == 10:
                a(*[f'v_add_u32 v{vXA+m}, s{73 + m//2}, v{vXA+m}' for m in range(4)])
            r = XR + 4 * (20 * st + u)
            ln = (u >> 2) - (0 if u < 10 else (3 if (u & 3) < 2 else 2))
            a(f'ds_read_b128 {vr(r,4)}, v{vXA + (u & 3)} offset:{ln*8192}')
        if st == 0:
            a(*[f'v_add_u32 v{vXA+m}, s{75 + m//2}, v{vXA+m}' for m in range(4)])
        for u in range(10):
            r = XR + 4 * (20 * st + u)
            for i in range(4):
                a(f'v_dot2c_f32_bf16 v{S0 + (i & 1)}, s72, v{r+i}', f'v_dot2c_f32_bf16 v{Q0 + (i & 1)}, v{r+i}, v{r+i}')
        if st == 1:
            a(f'v_add_f32 v20, v20, v21', 'v_add_f32 v21, v22, v23',
              'v_mov_b32 v22, v20', 'v_mov_b32 v23, v21',
              'v_permlane32_swap_b32 v20, v22', 'v_permlane32_swap_b32 v21, v23',
              'v_add_f32 v20, v20, v22', 'v_add_f32 v21, v21, v23',
              's_lshl_b32 s63, s60, 8', f's_add_u32 s63, s63, {L_PART}', 'v_lshlrev_b32 v16, 3, v1', 'v_add_u32 v16, s63, v16',
              's_lshl_b32 s64, s61, 9', 'v_add_u32 v17, s64, v16',
              'ds_write_b64 v17, v[20:21]')
        a('s_waitcnt lgkmcnt(0)')
    stats = Stream()
    stats('ds_read_b64 v[20:21], v16', 'ds_read_b64 v[22:23], v16 offset:512',
          'v_add_f32 v20, v20, v22', 'v_add_f32 v21, v21, v23')
    ln_math(stats, 20, 21, 24, 12, True)

    def epilogue(o):
        e = Stream()
        acc = ACC[o & 1]
        e(f's_add_u32 s63, s{sRS}, {o}', 's_cmp_ge_u32 s63, 3', 's_cselect_b32 s64, 3, 0', 's_sub_u32 s63, s63, s64',
          's_lshl_b32 s63, s63, 1', 's_add_u32 s63, s63, s61',
          's_lshl_b32 s64, s63, 7', f's_add_u32 s64, s64, {L_CS}',
          f'v_lshl_add_u32 v{vEA}, v2, 4, s64',
          f's_mul_i32 s64, s{sT}, 48', f's_mul_i32 s66, s{sJ}, 6', 's_add_u32 s64, s64, s66', 's_add_u32 s64, s64, s63',
          's_lshl_b32 s66, s64, 12')
        C, B, P, H = TMP, TMP + 4, TMP + 16, TMP + 20

        def rd(q):
            return [f'ds_read_b128 {vr(C + 8*(q & 1), 4)}, v{vEA} offset:{q*32}',
                    f'ds_read_b128 {vr(B + 8*(q & 1), 4)}, v{vEA} offset:{q*32 + L_B1 - L_CS}']
        e(rd(0))
        for q in range(4):
            if q < 3:
                e(rd(q + 1))
            c, b = C + 8 * (q & 1), B + 8 * (q & 1)
            A = acc + 4 * q
            for hf in (0, 2):
                e(f'v_pk_fma_f32 {vr(b+hf,2)}, {vr(vSS,2)}, {vr(c+hf,2)}, {vr(b+hf,2)} op_sel:[1,0,0] op_sel_hi:[1,1,1]')
            for hf in (0, 2):
                e(f'v_pk_fma_f32 {vr(b+hf,2)}, {vr(A+hf,2)}, {vr(vSS,2)}, {vr(b+hf,2)} op_sel_hi:[1,0,1]')
            for hf in (0, 2):
                e(f'v_pk_mul_f32 {vr(P+hf,2)}, {vr(b+hf,2)}, {vr(b+hf,2)}')
            for hf in (0, 2):
                e(f'v_pk_fma_f32 {vr(P+hf,2)}, {vr(P+hf,2)}, s[70:71], s[70:71] op_sel:[0,0,1] op_sel_hi:[1,0,1]')
            for hf in (0, 2):
                e(f'v_pk_mul_f32 {vr(P+hf,2)}, {vr(P+hf,2)}, {vr(b+hf,2)}')
            e(*[f'v_exp_f32 v{P+i}, v{P+i}' for i in range(4)])
            for hf in (0, 2):
                e(f'v_pk_add_f32 {vr(P+hf,2)}, {vr(P+hf,2)}, 1.0 op_sel_hi:[1,0]')
            e(*[f'v_rcp_f32 v{P+i}, v{P+i}' for i in range(4)])
            for hf in (0, 2):
                e(f'v_pk_mul_f32 {vr(P+hf,2)}, {vr(P+hf,2)}, {vr(b+hf,2)}')
            for hf in (0, 2):
                e(f'v_cvt_pk_bf16_f32 v{H + 2*(q & 1) + hf//2}, v{P+hf}, v{P+hf+1}')
            if q & 1:
                e(f'buffer_store_dwordx4 {vr(H,4)}, v{vHO}, s[{WS}:{WS+3}], s66 offen offset:{(q >> 1)*512} {sc}')
        return e.items

    PF = 3

    def wread(gs):
        u = gs % 20
        r = WF + 4 * (gs & 3)
        va = vWA + (1 if u >= 10 else 0)
        return [f'ds_read_b64_tr_b16 {vr(r,2)}, v{va} offset:{(u % 10)*2048}',
                f'ds_read_b64_tr_b16 {vr(r+2,2)}, v{va} offset:{(u % 10)*2048+512}']

    def stage_adv(sg):
        d = (((sg + 2) % 3) - ((sg + 1) % 3)) * SLOT
        op = 'v_add_u32' if d > 0 else 'v_subrev_u32'
        return [f'{op} v{vWA+i}, {abs(d)}, v{vWA+i}' for i in range(2)]

    bar(a)
    a('@stamp 3')
    for gs in range(PF):
        a(wread(gs))
    for sg in range(6):
        o = sg // 2
        acc = ACC[o & 1]
        m = []
        for u in range(20):
            gs = sg * 20 + u
            nx = gs + PF
            if nx % 20 == 0:
                m += ['s_waitcnt lgkmcnt(0)'] + ([f'@stamp {4+sg}'] if sg < 4 else []) + ['s_barrier']
                if nx < 120:
                    m += stage_adv(sg + 1)
            if nx < 120:
                m += wread(nx)
            wf = WF + 4 * (gs & 3)
            xr = XR + 4 * ((sg & 1) * 20 + u)
            c = '0' if (sg & 1) == 0 and u == 0 else vr(acc, 16)
            m.append(f'v_mfma_f32_32x32x16_bf16 {vr(acc,16)}, {vr(wf,4)}, {vr(xr,4)}, {c}')
            if u < 10:
                c = '0' if (sg & 1) == 0 and u == 0 else vr(CSA, 4)
                m.append(f'v_mfma_f32_16x16x32_bf16 {vr(CSA,4)}, {vr(SEL,4)}, {vr(wf,4)}, {c}')
            if (sg & 1) and u == 12:
                m += [f's_add_u32 s67, s{sRS}, {o}', 's_cmp_ge_u32 s67, 3', 's_cselect_b32 s68, 3, 0', 's_sub_u32 s67, s67, s68',
                      's_lshl_b32 s67, s67, 1', 's_add_u32 s67, s67, s61', 's_lshl_b32 s67, s67, 7', f's_add_u32 s67, s67, {L_CS}',
                      f'v_lshl_add_u32 v{vCA}, v0, 2, s67',
                      's_mov_b64 exec, 0xffff',
                      f'ds_add_f32 v{vCA}, v{CSA}', f'ds_add_f32 v{vCA}, v{CSA+1} offset:64',
                      's_mov_b64 exec, -1']
        big = lambda t: t.startswith('v_mfma_f32_32x32')
        if sg == 0:
            m = interleave(m, stats.items, 0, 16, big)
        elif sg in (2, 4):
            m = interleave(m, epilogue(o - 1), 1, 17, big)
        a(m)
    a('@stamp 8')
    a(epilogue(2))


def s_setup(a):
    a(f's_sub_u32 s60, s{sWAVE}, 4',
      f's_mul_i32 s61, s60, {S_SZ}', f's_add_u32 s61, s61, {L_S}',
      f's_mul_i32 s62, s{sJ}, 80', f's_lshr_b32 s63, s{sT}, 1', 's_mul_i32 s63, s63, 5', 's_add_u32 s62, s62, s63',
      f's_and_b32 s63, s{sT}, 1', 's_mul_i32 s63, s63, 3', 's_add_u32 s62, s62, s63', 's_add_u32 s62, s62, s60')


UT_RAW = 200
BOX = 228
FIX = 252


def ut_raw(a, ngroups):
    a('v_bfe_u32 v2, v0, 2, 2',
      'v_lshrrev_b32 v3, 4, v0',
      'v_lshl_add_u32 v3, v3, 4, v2',
      'v_bfe_u32 v4, v0, 1, 1',
      'v_and_b32 v5, 1, v0',
      'v_lshlrev_b32 v5, 3, v5',
      'v_lshl_add_u32 v5, v3, 7, v5',
      'v_lshrrev_b32 v2, 1, v2')
    for gi in range(ngroups):
        a(f's_and_b32 s63, s{sJ}, 3', 's_mul_i32 s63, s63, 5', 's_add_u32 s63, s63, s60', f's_add_u32 s63, s63, {3*gi}',
          's_min_u32 s63, s63, 19',
          's_lshr_b32 s64, s63, 2', 's_lshl_b32 s64, s64, 13',
          's_and_b32 s63, s63, 3', 's_lshl_b32 s63, s63, 1',
          'v_add_u32 v6, s63, v4', 'v_xor_b32 v6, v6, v2', 'v_add_u32 v7, s64, v5')
        for m in range(4):
            a(f'v_xor_b32 v8, {2*m}, v6', 'v_lshl_add_u32 v8, v8, 4, v7',
              f'ds_read_b64_tr_b16 {vr(UT_RAW + 8*gi + 2*m, 2)}, v8 offset:{m*512}')
    a('s_waitcnt lgkmcnt(0)')


def ut_finish(a, ngroups, WS, T0, sc=''):
    t = T0
    a(f'v_lshlrev_b32 v{t}, 3, v0', f'v_add_u32 v{t}, {L_PART}, v{t}',
      f'ds_read_b64 {vr(t+2,2)}, v{t}', f'ds_read_b64 {vr(t+4,2)}, v{t} offset:512',
      f'v_add_f32 v{t+2}, v{t+2}, v{t+4}', f'v_add_f32 v{t+3}, v{t+3}, v{t+5}')
    ln_math(a, t + 2, t + 3, t + 4, t + 8, False)
    a(f'v_lshl_add_u32 v{t}, v0, 2, s61',
      f'ds_write_b32 v{t}, v{t+8} offset:2304', f'ds_write_b32 v{t}, v{t+9} offset:2560',
      f'v_lshrrev_b32 v{t+1}, 4, v0', f'v_lshl_add_u32 v{t}, v{t+1}, 6, s61')
    SS, TT = t + 8, t + 24
    for m in range(4):
        a(f'ds_read_b128 {vr(SS+4*m,4)}, v{t} offset:{2304+16*m}', f'ds_read_b128 {vr(TT+4*m,4)}, v{t} offset:{2560+16*m}')
    a(f'v_and_b32 v{t}, 15, v0', f'v_mul_u32_u24 v{t}, 144, v{t}', f'v_lshl_add_u32 v{t}, v{t+1}, 5, v{t}', f'v_add_u32 v{t}, s61, v{t}',
      f'v_lshrrev_b32 v{t+2}, 3, v0', f'v_and_b32 v{t+3}, 7, v0', f'v_lshlrev_b32 v{t+3}, 4, v{t+3}',
      f'v_mul_u32_u24 v{t+1}, 144, v{t+2}', f'v_add3_u32 v{t+1}, v{t+1}, v{t+3}, s61',
      f'v_lshl_add_u32 v{t+2}, v{t+2}, 12, v{t+3}')
    for gi in range(ngroups):
        R = UT_RAW + 8 * gi
        for d in range(8):
            a(f'v_lshlrev_b32 v{t+4}, 16, v{R+d}', f'v_and_b32 v{t+5}, 0xffff0000, v{R+d}',
              f'v_pk_fma_f32 {vr(t+4,2)}, {vr(t+4,2)}, {vr(SS+2*d,2)}, {vr(TT+2*d,2)}',
              f'v_cvt_pk_bf16_f32 v{R+d}, v{t+4}, v{t+5}')
        a(f'ds_write_b128 v{t}, {vr(R,4)}', f'ds_write_b128 v{t}, {vr(R+4,4)} offset:16',
          f'ds_read_b128 {vr(R,4)}, v{t+1}', f'ds_read_b128 {vr(R+4,4)}, v{t+1} offset:{8*144}')
        a(f's_add_u32 s63, s60, {3*gi}', 's_lshl_b32 s64, s63, 16', f's_mul_i32 s65, s{sJ}, {80*4096}', 's_add_u32 s64, s64, s65',
          f's_lshl_b32 s65, s{sT}, 7', 's_add_u32 s64, s64, s65', f's_add_u32 s64, s64, {WS_UT}',
          's_cmp_ge_u32 s63, 5', f's_cselect_b32 s64, {WS_SIZE}, s64', 's_add_u32 s65, s64, 32768',
          f'buffer_store_dwordx4 {vr(R,4)}, v{t+2}, s[{WS}:{WS+3}], s64 offen {sc}',
          f'buffer_store_dwordx4 {vr(R+4,4)}, v{t+2}, s[{WS}:{WS+3}], s65 offen {sc}')


def const_frags(a):
    a('v_and_b32 v2, 15, v0', 'v_lshrrev_b32 v3, 4, v0', 'v_lshl_add_u32 v2, v3, 3, v2',
      's_mov_b32 s63, 0x8001', 's_mov_b32 s64, 0x10001', 'v_mov_b32 v5, 0')
    specs = [(4, 3, 8), (8, 5, 8), (12, 3, 8), (16, 5, 0), (8, 7, 8), (16, 9, 0)]
    lst = [(BOX + 4 * i, -off - (w - 1) // 2 - base, w, 0x3f80) for i, (off, w, base) in enumerate(specs)]
    lst.append((FIX, -12, 2, 0xffff))
    for reg, c, w, val in lst:
        a(f'v_add_u32 v3, {c + 32}, v2', 'v_min_u32 v3, 47, v3', f'v_mov_b32 v4, {(1 << w) - 1}',
          'v_lshlrev_b64 v[6:7], v3, v[4:5]')
        for d in range(4):
            a(f'v_bfe_u32 v{reg+d}, v7, {2*d}, 2', f'v_mul_u32_u24 v{reg+d}, s63, v{reg+d}',
              f'v_and_b32 v{reg+d}, s64, v{reg+d}', f'v_mul_u32_u24 v{reg+d}, {hex(val)}, v{reg+d}')


def cmul(d, x, w, t):
    return [f'v_pk_mul_f32 {vr(t,2)}, {vr(x,2)}, {vr(w,2)} op_sel:[1,1] op_sel_hi:[0,1]',
            f'v_pk_fma_f32 {vr(d,2)}, {vr(x,2)}, {vr(w,2)}, {vr(t,2)} op_sel_hi:[1,0,1] neg_lo:[0,0,1]']


KD = 16
PAR = 32


def scal_bf16(a, sreg, ch):
    a(f's_bitcmp1_b32 s{ch}, 0', 's_cselect_b32 s63, 0, 16', f's_lshl_b32 s{sreg}, s{sreg}, s63', f's_and_b32 s{sreg}, s{sreg}, 0xffff0000')


def kgen_loads(a):
    P = 52
    a(*[f'v_mov_b32 v{PAR+i}, 0' for i in range(12)])
    a('v_lshlrev_b32 v1, 1, v0', 's_mul_i32 s65, s62, 384', 's_lshr_b32 s66, s62, 1', 's_lshl_b32 s66, s66, 2')
    a('s_waitcnt lgkmcnt(0)')
    a(f's_load_dword s67, s[{sPDT}:{sPDT+1}], s66', f's_load_dword s68, s[{sPD}:{sPD+1}], s66', f's_load_dword s69, s[{sPB2}:{sPB2+1}], s66')
    SR = (52, 56, 72, 76)
    for k, ptr in enumerate((sPLA, sPAI, sPCR, sPCI)):
        srd(a, SR[k], ptr, 245760)
    for c in range(3):
        for k in range(4):
            a(f'buffer_load_short_d16_hi v{PAR + 4*c + k}, v1, s[{SR[k]}:{SR[k]+3}], s65 offen offset:{128*c}')


def kgen_body():
    pre = Stream()
    vDT, vRA, vWB = 44, 45, 46
    scal_bf16(pre, 67, 62); scal_bf16(pre, 68, 62); scal_bf16(pre, 69, 62)
    pre(f'v_mov_b32 v{vDT}, {f2h(LOG2E)}', f'v_mul_f32 v{vDT}, s67, v{vDT}', f'v_exp_f32 v{vDT}, v{vDT}')
    rbf(pre, vDT)
    pre(f'v_and_b32 v2, 31, v0', 'v_mul_u32_u24 v2, 272, v2', 'v_lshrrev_b32 v3, 5, v0', 'v_lshl_add_u32 v2, v3, 4, v2',
        f'v_add_u32 v{vRA}, s61, v2', f'v_lshl_add_u32 v{vWB}, v0, 2, s61')
    pre(*[f'v_add_u32 v{vWB+i}, {4*272*i}, v{vWB}' for i in range(1, 8)])
    pre(f's_mov_b32 s70, {f2h(-LOG2E)}', f's_mov_b32 s71, {f2h(1/(2*math.pi))}')
    AB, W1, W8, W256, T = 54, 56, 58, 60, 62
    E = 64
    PK = 88
    AF = 96
    BF = 128
    chunks = []
    for c in range(3):
        s = Stream()
        la, ai, cr, ci = PAR + 4 * c, PAR + 4 * c + 1, PAR + 4 * c + 2, PAR + 4 * c + 3
        s(f'v_mul_f32 v{la}, {f2h(LOG2E)}, v{la}', f'v_exp_f32 v{la}, v{la}')
        s(f'v_add_f32 v{T}, v{vDT}, v{vDT}')
        rbf(s, la)
        s(f'v_pk_mul_f32 {vr(E,2)}, {vr(cr,2)}, {vr(T,2)} op_sel_hi:[1,0]',
          f'v_pk_mul_f32 {vr(AB,2)}, {vr(la,2)}, {vr(vDT,2)} op_sel_hi:[1,0]',
          f'v_pk_mul_f32 {vr(AB,2)}, {vr(AB,2)}, s[70:71]')

        def direct(dst, p):
            src = AB
            if p != 1:
                s(f'v_mul_f32 v{T}, {f2h(p)}, v{AB}', f'v_mul_f32 v{T+1}, {f2h(p)}, v{AB+1}')
                src = T
            s(f'v_rndne_f32 v{dst}, v{src+1}', f'v_exp_f32 v{T}, v{src}', f'v_sub_f32 v{T+1}, v{src+1}, v{dst}',
              f'v_cos_f32 v{dst}, v{T+1}', f'v_sin_f32 v{dst+1}, v{T+1}',
              f'v_pk_mul_f32 {vr(dst,2)}, {vr(dst,2)}, {vr(T,2)} op_sel_hi:[1,0]')
        direct(W1, 1)
        direct(W256, 256)
        s(cmul(W8, W1, W1, T)); s(cmul(W8, W8, W8, T)); s(cmul(W8, W8, W8, T))
        pk = [0]

        def put(rowa, ea, rowb, eb, neg):
            n = '-' if neg else ''
            p = PK + 2 * (pk[0] & 1); pk[0] += 1
            if ea == 'one':
                s(f'v_mov_b32 v{p}, 0x3f80')
            else:
                s(f'v_cvt_pk_bf16_f32 v{p}, v{ea}, {n}v{ea+1}')
            if rowb is None:
                s(f'ds_write_b32 v{vWB + rowa//4}, v{p} offset:{(rowa % 4)*272}')
            else:
                assert rowa // 4 == rowb // 4
                s(f'v_cvt_pk_bf16_f32 v{p+1}, v{eb}, {n}v{eb+1}',
                  f'ds_write2_b32 v{vWB + rowa//4}, v{p}, v{p+1} offset0:{(rowa % 4)*68} offset1:{(rowb % 4)*68}')
        e0, e2, e4, e6, eo = E, E + 2, E + 4, E + 6, E + 8
        ev = [e0, e2, e4, e6]
        for i in range(4):
            s(cmul(eo, ev[i], W1, T))
            put(2 * i, ev[i], 2 * i + 1, eo, True)
            if i < 3:
                s(cmul(ev[i + 1], eo, W1, T))
        for i in range(4):
            s(cmul(ev[i], ev[i], W256, T))
        put(8, e0, 9, e2, True); put(12, e4, 13, e6, True)
        s(cmul(e0, e0, W256, T))
        s(cmul(e4, e4, W256, T))
        put(18, e0, None, None, True)
        s(cmul(e0, e0, W8, T))
        s(cmul(e6, e4, W256, T))
        s(cmul(e2, e0, W256, T))
        put(10, e4, 11, e6, True); put(14, e0, 15, e2, True)
        s(cmul(e0, e2, W256, T)); s(cmul(e2, e0, W256, T))
        put(16, e0, 17, e2, True)
        s(cmul(e0, e2, W256, T)); s(cmul(e2, e0, W256, T))
        put(20, e0, 21, e2, True)
        for k in range(8):
            s(f'ds_read_b128 {vr(AF+4*k,4)}, v{vRA} offset:{32*k}')
        put(0, 'one', 1, W8, False)
        prev = W8
        for i in range(1, 16):
            s(cmul(e0, prev, W8, T)); s(cmul(e2, e0, W8, T))
            put(2 * i, e0, 2 * i + 1, e2, False)
            prev = e2
        for k in range(8):
            s(f'ds_read_b128 {vr(BF+4*k,4)}, v{vRA} offset:{32*k}')
        for k in range(8):
            cc = '0' if c == 0 and k == 0 else vr(KD, 16)
            s(f'v_mfma_f32_32x32x16_bf16 {vr(KD,16)}, {vr(AF+4*k,4)}, {vr(BF+4*k,4)}, {cc}')
        chunks.append(s.items)
    return pre.items, chunks


AK = 32
T2 = 100
T3 = 124
CACC = 140
CB = 172
ZD = 204
ZF = 220
CP, C2, C3 = 1344, 5376, 7424


def build_frags(a):
    a('v_mov_b32 v4, 0', 'v_mov_b32 v5, 0', 'v_mov_b32 v6, 0', 'v_mov_b32 v7, 0',
      'v_lshl_add_u32 v2, v0, 4, s61')
    for i in range(9):
        a(f'ds_write_b128 v2, v[4:7] offset:{1024*i}')
    a('v_and_b32 v3, 31, v0', 'v_lshrrev_b32 v1, 5, v0', 'v_lshl_add_u32 v8, v3, 1, v1',
      'v_lshlrev_b32 v9, 3, v8', 'v_sub_u32 v9, s61, v9',
      'v_cmp_eq_u32 vcc, 0, v0', 'v_mov_b32 v10, s68', 'v_cndmask_b32 v10, 0, v10, vcc',
      f'v_add_f32 v{KD}, v{KD}, v10')

    def seq(xs, p0, p1, mid):
        for rho in range(4):
            x = xs + rho
            o = rho * CP + 2 * x
            if x % 4 == 0:
                a(f'ds_write_b64 v9, {vr(p0,2)} offset:{o}')
            elif x % 2 == 0:
                a(f'ds_write_b32 v9, v{p0} offset:{o}', f'ds_write_b32 v9, v{p1} offset:{o+4}')
            else:
                a(f'ds_write_b16 v9, v{p0} offset:{o}', f'ds_write_b32 v9, v{mid} offset:{o+2}', f'ds_write_b16_d16_hi v9, v{p1} offset:{o+6}')
    a(f'v_cvt_pk_bf16_f32 v4, v{KD+5}, v{KD+4}', f'v_cvt_pk_bf16_f32 v5, v{KD+4}, v{KD+4}')
    seq(282, 4, 5, 5)
    a(f'v_cvt_pk_bf16_f32 v6, v{KD+10}, v{KD+10}', f'v_cvt_pk_bf16_f32 v7, v{KD+10}, v{KD+10}', 's_mov_b64 exec, 1')
    seq(26, 6, 7, 7)
    a('s_mov_b64 exec, -1')
    a(f'v_cvt_pk_bf16_f32 v10, v{KD+3}, v{KD+2}', f'v_cvt_pk_bf16_f32 v11, v{KD+1}, v{KD}', f'v_cvt_pk_bf16_f32 v12, v{KD+2}, v{KD+1}')
    seq(537, 10, 11, 12)
    a(f'v_cvt_pk_bf16_f32 v4, v{KD+6}, v{KD+7}', f'v_cvt_pk_bf16_f32 v5, v{KD+8}, v{KD+9}',
      'v_and_b32 v6, 3, v8', 'v_lshlrev_b32 v6, 9, v6', 'v_lshrrev_b32 v7, 2, v8', 'v_lshlrev_b32 v7, 1, v7', 'v_sub_u32 v6, v6, v7',
      'v_add_u32 v6, s61, v6')
    for sg in range(4):
        o = C2 + 2 * (76 - 32) + 130 * sg
        a(f'ds_write_b16 v6, v4 offset:{o}', f'ds_write_b16_d16_hi v6, v4 offset:{o-32}')
    a('v_and_b32 v6, 1, v3', 'v_mul_u32_u24 v6, 640, v6', 'v_and_b32 v7, 30, v3', 'v_lshl_add_u32 v7, v1, 6, v7', 'v_sub_u32 v6, v6, v7',
      'v_add_u32 v6, s61, v6')
    for sg in range(4):
        o = C3 + 2 * (124 - 64) + 162 * sg
        a(f'ds_write_b16 v6, v5 offset:{o}', f'ds_write_b16_d16_hi v6, v5 offset:{o-32}')
    a('v_readlane_b32 s63, v4, 63', 's_pack_hh_b32_b16 s63, s63, s63')
    a(*[f'v_and_b32 v{FIX+d}, s63, v{FIX+d}' for d in range(4)])
    a('v_and_b32 v2, 3, v0', 'v_and_b32 v3, 12, v0', 'v_lshrrev_b32 v4, 4, v0',
      f'v_mul_u32_u24 v5, {CP}, v2', 'v_lshl_add_u32 v6, v4, 3, v3', 'v_lshlrev_b32 v6, 1, v6', 'v_sub_u32 v5, v5, v6',
      'v_add_u32 v5, s61, v5')
    for t in range(17):
        o = 2 * (548 - 32 * t)
        a(f'ds_read_b64 {vr(AK+4*t,2)}, v5 offset:{o}', f'ds_read_b64 {vr(AK+4*t+2,2)}, v5 offset:{o+8}')
    a('v_lshlrev_b32 v6, 2, v4', 'v_sub_u32 v6, v6, v3', 'v_lshlrev_b32 v6, 1, v6', 'v_add_u32 v6, s61, v6',
      'v_lshl_add_u32 v7, v2, 7, v6', 'v_mul_u32_u24 v8, 160, v2', 'v_add_u32 v8, v8, v6')
    for dl in (2, 3, 4):
        for pr in range(2):
            r = T2 + 4 * (2 * (dl - 2) + pr)
            for f in range(2):
                a(f'ds_read_b64 {vr(r+2*f,2)}, v7 offset:{C2 + (2*pr+f)*512 + 2*(76-16*dl)}')
    for dl in (4, 5, 6, 7):
        r = T3 + 4 * (dl - 4)
        for f in range(2):
            a(f'ds_read_b64 {vr(r+2*f,2)}, v8 offset:{C3 + f*640 + 2*(124-16*dl)}')
    a('v_mov_b32 v4, 0', 'v_mov_b32 v5, 0', 'v_lshl_add_u32 v2, v0, 3, s61', 'ds_write_b64 v2, v[4:5]')
    a(*[f'v_mov_b32 v{CACC+i}, s69' for i in range(32)])


def conv_load_u(a, WS, sc=''):
    a('v_lshlrev_b32 v2, 4, v0', 's_lshl_b32 s63, s62, 12', f's_add_u32 s63, s63, {WS_UT}')
    for i in range(4):
        a(f'buffer_load_dwordx4 {vr(CB+4*i,4)}, v2, s[{WS}:{WS+3}], s63 offen offset:{1024*i} {sc}')


def conv_body(a, WS, sc=''):
    a('v_add_u32 v3, s61, v2')
    for i in range(4):
        a(f'ds_write_b128 v3, {vr(CB+4*i,4)} offset:{512+1024*i}')
    a('v_and_b32 v4, 15, v0', 'v_lshrrev_b32 v5, 4, v0', 'v_lshlrev_b32 v6, 5, v4', 'v_lshlrev_b32 v7, 4, v5', 'v_sub_u32 v6, v6, v7',
      f'v_add_u32 v6, {512+16-448-16}, v6', 'v_add_u32 v6, s61, v6')
    mf = lambda c, x, y, z=None: f'v_mfma_f32_16x16x32_bf16 {vr(c,4)}, {vr(x,4)}, {vr(y,4)}, {z or vr(c,4)}'
    acc = lambda c: CACC + 4 * c
    seq = []

    def cv(slot):
        d, z = ZD + 8 * slot, ZF + 4 * slot
        return [f'v_cvt_pk_bf16_f32 v{z+i}, v{d+2*i}, v{d+2*i+1}' for i in range(4)]
    for r in range(8):
        beta = r - 1
        stair = 0 <= beta <= 5
        extra = {}
        if stair:
            seq.append((16 + 448 + 512 * beta, lambda b: [mf(ZD, b, BOX, '0'), mf(ZD + 4, b, BOX + 4, '0'), mf(ZD + 8, b, BOX + 8, '0')]))
            seq.append((448 + 512 * beta, lambda b: [mf(ZD + 12, b, BOX + 12, '0')]))
            m2 = lambda pr, be=beta: [mf(acc(be + dl), ZF + 4 * pr, T2 + 4 * (2 * (dl - 2) + pr)) for dl in (2, 3, 4) if be + dl <= 7]
            extra[1] = cv(0)
            extra[2] = cv(1)
            extra[3] = m2(0) + m2(1)
        for jb in range(8):
            def f(b, r=r, jb=jb, ex=extra.get(jb, [])):
                o = [mf(acc(jb), AK + 4 * r, b)]
                if jb <= 6:
                    o.append(mf(acc(jb + 1), AK + 4 * (8 + r), b))
                if r == 0 and jb <= 5:
                    o.append(mf(acc(jb + 2), AK + 64, b))
                if r == 0 and jb <= 3:
                    o.append(mf(acc(jb + 4), FIX, b))
                return o + ex
            seq.append((16 + 448 + 512 * jb - 64 * r, f))
            if stair and beta <= 3 and jb == 3:
                seq.append((16 + 448 + 512 * beta, lambda b: [mf(ZD, b, BOX + 16, '0')]))
                seq.append((448 + 512 * beta, lambda b: [mf(ZD + 4, b, BOX + 20, '0')]))
                extra[6] = cv(0)
                extra[7] = [mf(acc(beta + dl), ZF, T3 + 4 * (dl - 4)) for dl in (4, 5, 6, 7) if beta + dl <= 7]
    PFD = 6
    for i in range(min(PFD, len(seq))):
        a(f'ds_read_b128 {vr(CB + 4*(i % 8), 4)}, v6 offset:{seq[i][0]}')
    for i, (off, fn) in enumerate(seq):
        if i + PFD < len(seq):
            a(f'ds_read_b128 {vr(CB + 4*((i+PFD) % 8), 4)}, v6 offset:{seq[i+PFD][0]}')
        a(fn(CB + 4 * (i % 8)))
    a('@stamp 4')
    a('v_and_b32 v6, 1, v5', 'v_lshlrev_b32 v6, 9, v6', 'v_lshrrev_b32 v7, 2, v4', 'v_lshl_add_u32 v6, v7, 7, v6',
      'v_lshrrev_b32 v7, 1, v5', 'v_lshl_add_u32 v6, v7, 6, v6', 'v_and_b32 v7, 3, v4', 'v_lshl_add_u32 v6, v7, 4, v6',
      's_lshl_b32 s63, s62, 12', f's_add_u32 s63, s63, {WS_YT}')
    for p in range(4):
        o = CB + 4 * p
        c0, c1 = acc(2 * p), acc(2 * p + 1)
        a(f'v_cvt_pk_bf16_f32 v{o}, v{c0}, v{c0+1}', f'v_cvt_pk_bf16_f32 v{o+1}, v{c0+2}, v{c0+3}',
          f'v_cvt_pk_bf16_f32 v{o+2}, v{c1}, v{c1+1}', f'v_cvt_pk_bf16_f32 v{o+3}, v{c1+2}, v{c1+3}')
    for p in range(4):
        o = CB + 4 * p
        a(f'v_permlane16_swap_b32 v{o}, v{o+2}', f'v_permlane16_swap_b32 v{o+1}, v{o+3}',
          f'buffer_store_dwordx4 {vr(o,4)}, v6, s[{WS}:{WS+3}], s63 offen offset:{1024*p} {sc}')


def sprinkle(a, items, cuts):
    for i, t in enumerate(items):
        if i in cuts:
            cuts[i]()
        a(t)
    if len(items) in cuts:
        cuts[len(items)]()


def p1_ssm(a, tail, sc=''):
    WS = 48
    kgen_loads(a)
    srd(a, WS, sPWS, WS_SIZE)
    const_frags(a)
    pre, ch = kgen_body()
    a('@stamp 1')
    a(pre)
    n = len(ch[0])
    a(ch[0][:4])
    a('@stamp 2')
    a(ch[0][4:])
    a('@stamp 3')
    bar(a)
    ut_raw(a, 2)
    sprinkle(a, ch[1], {n // 2: lambda: (a('@stamp 4'), bar(a))})
    a('@stamp 5')
    bar(a)
    ut_finish(a, 2, WS, 160, sc)
    a('@stamp 6')
    bar(a)
    sprinkle(a, ch[2], {n // 2: lambda: (a('@stamp 7'), bar(a))})
    a('@stamp 8')
    bar(a)
    tail(a)


def p1_pack(a, sc=''):
    WS, W2 = 48, 52
    a('s_waitcnt lgkmcnt(0)')
    srd(a, WS, sPWS, WS_SIZE)
    srd(a, W2, sPW2, 1966080)
    a('v_lshrrev_b32 v10, 3, v0', 'v_and_b32 v11, 7, v0', 'v_mul_u32_u24 v10, 1280, v10', 'v_lshl_add_u32 v10, v11, 4, v10',
      'v_lshrrev_b32 v11, 5, v0', 'v_lshlrev_b32 v11, 4, v11', 'v_bfe_u32 v12, v0, 4, 1', 'v_lshl_add_u32 v11, v12, 2, v11',
      'v_bfe_u32 v12, v0, 2, 2', 'v_add_u32 v11, v11, v12', 'v_lshlrev_b32 v11, 7, v11', 'v_and_b32 v12, 3, v0',
      'v_lshl_add_u32 v11, v12, 3, v11', 'v_add_u32 v11, s61, v11',
      'v_lshlrev_b32 v12, 4, v0',
      f's_lshl_b32 s66, s{sJ}, 4', f's_lshr_b32 s67, s{sT}, 1', 's_add_u32 s66, s66, s67', 's_lshl_b32 s66, s66, 2')
    bar(a)
    ut_raw(a, 1)
    bar(a)
    bar(a)
    ut_finish(a, 1, WS, 160, sc)
    a('s_waitcnt lgkmcnt(0)')
    for rnd in range(2):
        for i in range(2):
            a(f's_add_u32 s67, s66, {2*rnd+i}', 's_mul_i32 s68, s67, 6554', f's_lshr_b32 s{70+2*i}, s68, 16',
              f's_mul_i32 s68, s{70+2*i}, 10', f's_sub_u32 s{71+2*i}, s67, s68',
              f's_min_u32 s67, s{70+2*i}, 47', f's_mul_i32 s67, s67, {32*1280}', f's_lshl_b32 s68, s{71+2*i}, 7', 's_add_u32 s67, s67, s68',
              f's_add_u32 m0, s61, {4096*i}')
            for p in range(4):
                a(f'buffer_load_dwordx4 v10, s[{W2}:{W2+3}], s67 offen lds')
                if p < 3:
                    a('s_add_u32 m0, m0, 1024', f's_add_u32 s67, s67, {8*1280}')
        a('@markvm pk')
        bar(a)
        a('@waitvm pk')
        for i in range(2):
            for n in range(4):
                r = 32 + 16 * i + 4 * n
                a(f'ds_read_b64_tr_b16 {vr(r,2)}, v11 offset:{4096*i + 32*n}', f'ds_read_b64_tr_b16 {vr(r+2,2)}, v11 offset:{4096*i + 32*n + 1024}')
        for i in range(2):
            for n in range(4):
                r = 32 + 16 * i + 4 * n
                a(f's_lshl_b32 s67, s{71+2*i}, 2', f's_add_u32 s67, s67, {n}', 's_mul_i32 s68, s67, 52', 's_lshr_b32 s68, s68, 8',
                  's_mul_i32 s68, s68, 235', 's_add_u32 s67, s67, s68',
                  f's_mul_i32 s68, s{70+2*i}, 5', 's_add_u32 s67, s67, s68', 's_lshl_b32 s67, s67, 10', f's_add_u32 s67, s67, {WS_W2P}',
                  f's_cmp_ge_u32 s{70+2*i}, 48', f's_cselect_b32 s67, {WS_SIZE}, s67',
                  f'buffer_store_dwordx4 {vr(r,4)}, v12, s[{WS}:{WS+3}], s67 offen {sc}')
        bar(a)
    bar(a); bar(a)


def p2_gemm(a, sc=''):
    WS, X, O = 48, 52, 56
    FR = 112
    A2 = 32
    srd(a, WS, sPWS, WS_SIZE)
    srd(a, X, sPX, 2621440)
    srd(a, O, sPOUT, 2621440)
    a('v_lshlrev_b32 v2, 4, v0', 'v_add_u32 v3, 4096, v2',
      f's_mul_i32 s60, s{sT}, 48', f's_mul_i32 s61, s{sWAVE}, 12', 's_add_u32 s60, s60, s61',
      f's_mul_i32 s62, s{sJ}, 48', 's_add_u32 s62, s62, s61')
    steps = [(o, jp, jw) for o in range(3) for jp in range(2) for jw in range(2)]

    def loads(i):
        o, jp, jw = steps[i]
        r = FR + 36 * (i & 3)
        l = []
        if jp == 0 and jw == 0:
            l += [f's_add_u32 s63, s{sRS}, {o}', 's_cmp_ge_u32 s63, 3', 's_cselect_b32 s64, 3, 0', 's_sub_u32 s63, s63, s64', 's_lshl_b32 s63, s63, 1',
                  's_add_u32 s64, s63, s60', 's_lshl_b32 s64, s64, 12',
                  's_add_u32 s65, s63, s62', 's_mul_i32 s65, s65, 5120', f's_add_u32 s65, s65, {WS_W2P}']
        d = 6 * jp + jw
        l += [f's_add_u32 s66, s64, {d*4096}', f's_add_u32 s67, s65, {d*5120}']
        for n in range(5):
            l.append(f'buffer_load_dwordx4 {vr(r+16+4*n,4)}, v{2 + n//4}, s[{WS}:{WS+3}], s67 offen offset:{(n % 4)*1024} {sc}')
            if n < 4:
                l.append(f'buffer_load_dwordx4 {vr(r+4*n,4)}, v2, s[{WS}:{WS+3}], s66 offen offset:{n*1024} {sc}')
        return l
    a('@stamp 1')
    for i in range(3):
        a(loads(i))
    XV = 16
    fin = Stream()
    fin(f's_lshl_b32 s68, s{sWAVE}, 6', 'v_add_u32 v4, s68, v0',
        f's_mul_i32 s69, s{sT}, {64*1280}', f's_mul_i32 s68, s{sJ}, 160', 's_add_u32 s69, s69, s68')
    for m in range(3):
        fin(f'v_add_u32 v5, {256*m}, v4', 'v_mul_u32_u24 v6, 6554, v5', 'v_lshrrev_b32 v6, 16, v6',
            'v_mul_u32_u24 v28, 10, v6', 'v_sub_u32 v28, v5, v28',
            f'v_mul_u32_u24 v{7+m}, 1280, v6', f'v_lshl_add_u32 v{7+m}, v28, 4, v{7+m}',
            f'v_mul_u32_u24 v{10+m}, {P_STR}, v6', f'v_lshl_add_u32 v{10+m}, v28, 5, v{10+m}',
            f'v_mul_u32_u24 v{13+m}, 176, v6', f'v_lshl_add_u32 v{13+m}, v28, 4, v{13+m}', f'v_add_u32 v{13+m}, {L_YR}, v{13+m}')
        if m == 2:
            fin('v_cmp_gt_u32 vcc, 640, v5', 'v_mov_b32 v28, 0x7ffffff0', 'v_cndmask_b32 v9, v28, v9, vcc',
                'v_cndmask_b32 v12, 0, v12, vcc', 'v_cndmask_b32 v15, 0, v15, vcc')
        fin(f'buffer_load_dwordx4 {vr(XV+4*m,4)}, v{7+m}, s[{X}:{X+3}], s69 offen')
    fin('v_and_b32 v5, 15, v0', f'v_mul_u32_u24 v5, {P_STR}, v5', 'v_lshrrev_b32 v6, 4, v0', 'v_lshl_add_u32 v5, v6, 4, v5',
        f's_mul_i32 s68, s{sWAVE}, {P_SZ}', 'v_add_u32 v4, s68, v5')
    for i in range(12):
        r = FR + 36 * (i & 3)
        m = []
        for tg in range(4):
            for n in range(5):
                c = A2 + 4 * (5 * tg + n)
                m.append(f'v_mfma_f32_16x16x32_bf16 {vr(c,4)}, {vr(r+16+4*n,4)}, {vr(r+4*tg,4)}, {"0" if i == 0 else vr(c,4)}')
        if i + 3 < 12:
            a(loads(i + 3))
        if i == 9:
            m = interleave(m, fin.items)
        a(m)
        if i in (0, 3, 7, 11):
            a(f'@stamp {2 + (i+1)//4}')
    for tg in range(4):
        for n in range(5):
            c = A2 + 4 * (5 * tg + n)
            a(f'ds_write_b128 v4, {vr(c,4)} offset:{16*tg*P_STR + 64*n}')
    a('s_waitcnt lgkmcnt(0)', '@stamp 6')
    bar(a)
    a('@stamp 7')
    for m in range(3):
        R = 32 + 36 * m
        for w in range(4):
            hi = 0
            a(f'ds_read_b128 {vr(R+8*w,4)}, v{10+m} offset:{w*P_SZ}', f'ds_read_b128 {vr(R+8*w+4,4)}, v{10+m} offset:{w*P_SZ+16}')
        a(f'ds_read_b128 {vr(R+32,4)}, v{13+m}')
    for m in range(3):
        R = 32 + 36 * m
        for d in range(4):
            p = lambda w: vr(R + 8 * w + 2 * d, 2)
            a(f'v_pk_add_f32 {p(0)}, {p(0)}, {p(1)}', f'v_pk_add_f32 {p(2)}, {p(2)}, {p(3)}',
              f'v_lshlrev_b32 v28, 16, v{XV+4*m+d}', f'v_and_b32 v29, 0xffff0000, v{XV+4*m+d}',
              f'v_lshlrev_b32 v30, 16, v{R+32+d}', f'v_and_b32 v31, 0xffff0000, v{R+32+d}',
              f'v_pk_add_f32 {p(0)}, {p(0)}, {p(2)}', 'v_pk_add_f32 v[28:29], v[28:29], v[30:31]',
              f'v_pk_add_f32 {p(0)}, {p(0)}, v[28:29]',
              f'v_cvt_pk_bf16_f32 v{R+32+d}, v{R+2*d}, v{R+2*d+1}')
        a(f'buffer_store_dwordx4 {vr(R+32,4)}, v{7+m}, s[{O}:{O+3}], s69 offen')


def p2_ystage(a, sc=''):
    WS = 48
    srd(a, WS, sPWS, WS_SIZE)
    a('v_lshrrev_b32 v2, 3, v0', 'v_and_b32 v3, 7, v0', 'v_lshlrev_b32 v3, 4, v3',
      'v_lshl_add_u32 v4, v2, 12, v3',
      'v_mul_u32_u24 v5, 144, v2', 'v_add_u32 v5, v5, v3', f'v_add_u32 v5, {L_YC}, v5',
      f's_mul_i32 s60, s{sJ}, {80*4096}', f's_lshl_b32 s61, s{sT}, 7', 's_add_u32 s60, s60, s61', f's_add_u32 s60, s60, {WS_YT}')
    for i in range(10):
        a(f'buffer_load_dwordx4 {vr(16+4*i,4)}, v4, s[{WS}:{WS+3}], s60 offen {sc}')
        if i < 9:
            a('s_add_u32 s60, s60, 32768')
    a('v_lshrrev_b32 v6, 2, v0', 'v_mul_u32_u24 v6, 144, v6', 'v_bfe_u32 v7, v0, 1, 1', 'v_lshl_add_u32 v6, v7, 6, v6',
      'v_and_b32 v7, 1, v0', 'v_lshl_add_u32 v6, v7, 3, v6', f'v_add_u32 v6, {L_YC}, v6',
      'v_and_b32 v7, 15, v0', 'v_mul_u32_u24 v7, 176, v7', 'v_lshrrev_b32 v8, 4, v0', 'v_lshl_add_u32 v7, v8, 3, v7', f'v_add_u32 v7, {L_YR}, v7')
    for i in range(10):
        a(f'ds_write_b128 v5, {vr(16+4*i,4)} offset:{8*144*i}')
    for n in range(5):
        for tg in range(4):
            a(f'ds_read_b64_tr_b16 {vr(64 + 2*(4*n+tg), 2)}, v6 offset:{16*144*n + 16*tg}')
    for n in range(5):
        for tg in range(4):
            a(f'ds_write_b64 v7, {vr(64 + 2*(4*n+tg), 2)} offset:{16*176*tg + 32*n}')
    a('s_waitcnt lgkmcnt(0)')
    bar(a)


def kd(name, vgpr=256, sgpr=102):
    return f'''.amdhsa_kernel {name}
  .amdhsa_next_free_vgpr {vgpr}
  .amdhsa_next_free_sgpr {sgpr}
  .amdhsa_accum_offset {(vgpr+3)//4*4}
  .amdhsa_group_segment_fixed_size 0
  .amdhsa_kernarg_size 120
  .amdhsa_user_sgpr_count 2
  .amdhsa_user_sgpr_kernarg_segment_ptr 1
  .amdhsa_system_sgpr_workgroup_id_x 1
.end_amdhsa_kernel
'''


def khead(name):
    return f'.globl {name}\n.p2align 8\n.type {name},@function\n{name}:\n'


def role(name, fn, stats, kidx=0):
    s = Stream(name)
    s(f'{name}:')
    fn(s)
    diag_end(s, kidx)
    s('s_endpgm')
    return '.p2align 6\n' + s.render(stats)


def build3():
    st = {}
    o = ''
    p = Stream('A_pro'); prologue(p, 'A_end')
    p(f's_cmp_lt_u32 s{sWAVE}, 4', 's_cbranch_scc1 A_g', f's_cmp_eq_u32 s{sWAVE}, 7', 's_cbranch_scc1 A_l')
    s_setup(p)
    p(f's_and_b32 s63, s{sT}, 1', 's_add_u32 s63, s63, s60', 's_cmp_eq_u32 s63, 3', 's_cbranch_scc1 A_p', 's_branch A_s', 'A_end:', 's_endpgm')
    o += khead('ka_kernel') + p.render(st)

    def tailA(a):
        a('v_lshlrev_b32 v2, 2, v0', 's_mul_i32 s63, s62, 2816', f's_add_u32 s63, s63, {WS_KC}')
        for e in range(11):
            a(f'buffer_store_dword v{KD+e}, v2, s[48:51], s63 offen offset:{256*e}')
        bar(a); bar(a); bar(a)
    o += role('A_l', p1_loader, st) + role('A_g', p1_gemm, st) + role('A_s', lambda a: p1_ssm(a, tailA), st) + role('A_p', p1_pack, st)
    p = Stream('B'); prologue(p, 'B_end')
    p(f's_add_u32 s{sWAVE}, s{sWAVE}, 4')
    s_setup(p)
    p(f's_and_b32 s63, s{sT}, 1', 's_add_u32 s63, s63, s60', 's_cmp_eq_u32 s63, 3', 's_cbranch_scc1 B_end')
    p('s_lshr_b32 s66, s62, 1', 's_lshl_b32 s66, s66, 2', 's_waitcnt lgkmcnt(0)')
    p(f's_load_dword s68, s[{sPD}:{sPD+1}], s66', f's_load_dword s69, s[{sPB2}:{sPB2+1}], s66')
    srd(p, 48, sPWS, WS_SIZE)
    p('v_lshlrev_b32 v2, 2, v0', 's_mul_i32 s63, s62, 2816', f's_add_u32 s63, s63, {WS_KC}')
    for e in range(11):
        p(f'buffer_load_dword v{KD+e}, v2, s[48:51], s63 offen offset:{256*e}')
    conv_load_u(p, 48)
    p('@stamp 1')
    const_frags(p)
    scal_bf16(p, 68, 62); scal_bf16(p, 69, 62)
    p('@stamp 2')
    build_frags(p)
    p('v_lshlrev_b32 v2, 4, v0')
    p('@stamp 3')
    conv_body(p, 48)
    p('@stamp 5')
    diag_end(p, 1)
    p('B_end:', 's_endpgm')
    o += khead('kb_kernel') + p.render(st)
    p = Stream('C_pro'); prologue(p, 'C_end')
    p('s_waitcnt lgkmcnt(0)', f's_cmp_lt_u32 s{sWAVE}, 4', 's_cbranch_scc1 C_g', 's_branch C_y', 'C_end:', 's_endpgm')
    o += khead('kc_kernel') + p.render(st)
    o += role('C_g', p2_gemm, st, 2) + role('C_y', p2_ystage, st, 2)
    hdr = ('; @launch kernel=ka_kernel grid=(256,1,1) block=(512,1,1) lds=163840\n'
           '; @launch kernel=kb_kernel grid=(256,1,1) block=(192,1,1) lds=163840\n'
           '; @launch kernel=kc_kernel grid=(256,1,1) block=(320,1,1) lds=163840\n'
           '.amdgcn_target "amdgcn-amd-amdhsa--gfx950"\n.text\n')
    tail = '.section .rodata,"a"\n' + ''.join('.p2align 6\n' + kd(k) for k in ('ka_kernel', 'kb_kernel', 'kc_kernel'))
    for k, v in st.items():
        print(k, v, file=sys.stderr)
    return hdr + o + tail


if __name__ == '__main__':
    out = sys.argv[1] if len(sys.argv) > 1 else f'cdna_kernels/{NAME}.s'
    Stream.diag = 'diag' in sys.argv
    open(out, 'w').write(build3())
```

```python
import gen, sys
def probe(s, mode, first):
    lines=s.split('\n')
    L=[l for l in lines if l.startswith('; @launch')]
    rest='\n'.join(l for l in lines if not l.startswith('; @launch'))
    stamp = f'''{first}:
  s_cmp_ge_u32 s2, 8
  s_cbranch_scc1 PR_skip
  s_memrealtime s[10:11]
  s_load_dwordx2 s[12:13], s[0:1], 112
  s_lshl_b32 s14, s2, 2
  s_add_u32 s14, s14, 0x3000000
  s_waitcnt lgkmcnt(0)
  v_mov_b32 v2, s14
  v_mov_b32 v3, s10
  global_store_dword v2, v3, s[12:13]
PR_skip:
'''
    rest=rest.replace(first+':\n', stamp)
    op = {'min':'s_min_u32','max':'s_max_u32','none':'s_min_u32'}[mode]
    k = gen.khead('kp_kernel') + '''  s_cmp_ge_u32 s2, 1
  s_cbranch_scc1 KP_end
  s_load_dwordx2 s[12:13], s[0:1], 112
  s_waitcnt lgkmcnt(0)
  s_add_u32 s12, s12, 0x3000000
  s_addc_u32 s13, s13, 0
  s_load_dwordx8 s[16:23], s[12:13], 0
  s_memrealtime s[10:11]
  s_waitcnt lgkmcnt(0)
''' + ''.join(f'  {op} s16, s16, s{17+i}\n' for i in range(7)) + '''  s_sub_u32 s17, s10, s16
  s_min_u32 s17, s17, 20000
''' + ('  s_mov_b32 s17, 0\n' if mode=='none' else '') + '''KP_l:
  s_memrealtime s[14:15]
  s_waitcnt lgkmcnt(0)
  s_sub_u32 s18, s14, s10
  s_cmp_lt_u32 s18, s17
  s_cbranch_scc1 KP_l
KP_end:
  s_endpgm
'''
    rest=rest.replace('.section .rodata,"a"', k+'.section .rodata,"a"\n.p2align 6\n'+gen.kd('kp_kernel',8,32))
    return '\n'.join(L+['; @launch kernel=kp_kernel grid=(1,1,1) block=(64,1,1) lds=0'])+'\n'+rest
if __name__=='__main__':
    s=open(sys.argv[1]).read()
    for m in ('none','min','max'):
        open(f'v_pr_{m}.s','w').write(probe(s,m,sys.argv[2]))
```
